```python
import torch

def _softmax(x, axis=-1):
    return torch.softmax(x, dim=axis)
def _gelu(x):
    return torch.nn.functional.gelu(x, approximate="tanh")
def _silu(x):
    return torch.nn.functional.silu(x)
def _sigmoid(x):
    return torch.sigmoid(x)
def _layernorm(x, axis=-1, eps=1e-5):
    m = x.mean(dim=axis, keepdim=True)
    v = x.var(dim=axis, keepdim=True, unbiased=False)
    return (x - m) / torch.sqrt(v + eps)
def _scatter_add(tgt, idx, src, axis=0):
    return tgt.clone().index_add_(axis, idx, src)
def _segment_sum(src, seg, n):
    out = torch.zeros((n,) + src.shape[1:], dtype=src.dtype)
    return out.index_add_(0, seg, src)
def _pad(x, pw):
    flat = tuple(v for pair in reversed(pw) for v in pair)
    return torch.nn.functional.pad(x, flat)

kernel_name = 'gated_mix__softmax_full_mha__dense_activation_silu__prompt'

def setup_inputs():

    _w = (lambda a: (lambda t: t.to(torch.bfloat16) if t.is_floating_point() else t)(torch.as_tensor(a)))
    def _A_setup():
        B, S, D = 1, 2048, 640
        return {
            "x": _w((lambda *s: torch.randn(*s, dtype=torch.bfloat16) * 0.1)(B, S, D)),
            "wqkv": _w((lambda *s: torch.randn(*s, dtype=torch.bfloat16) * 0.4)(D, 3 * D)),
            "wo": _w((lambda *s: torch.randn(*s, dtype=torch.bfloat16) * 0.2)(D, D)),
        }
    _A_in = _A_setup()

    def _B_setup():
        B, S, D, F = 1, 2048, 640, 1536
        return {
            "x": _w((lambda *s: torch.randn(*s, dtype=torch.bfloat16) * 0.1)(B, S, D)),
            "w1": _w((lambda *s: torch.randn(*s, dtype=torch.bfloat16) * 3.2)(D, F) * (D ** -0.5)),
            "w2": _w((lambda *s: torch.randn(*s, dtype=torch.bfloat16) * 3.2)(F, D) * (F ** -0.5)),
        }
    _B_in = _B_setup()

    return {
        "A_x": _A_in["x"],
        "A_wqkv": _A_in["wqkv"],
        "A_wo": _A_in["wo"],
        "B_x": _B_in["x"],
        "B_w1": _B_in["w1"],
        "B_w2": _B_in["w2"],
        "gate_w": _w((lambda *s: torch.randn(*s, dtype=torch.bfloat16) * 0.1)(640) * 16.0),
    }

def reference(A_x, A_wqkv, A_wo, B_x, B_w1, B_w2, gate_w):
    def _A_ref(x, wqkv, wo):
        B, S, D = x.shape
        H = 32; Dh = D // H
        qkv = (lambda x, *d: x.permute(*d))((x @ wqkv).reshape(B, S, 3, H, Dh), 2, 0, 3, 1, 4)
        q, k, v = qkv[0], qkv[1], qkv[2]
        scale = Dh ** -0.5
        scores = torch.einsum("bhqd,bhkd->bhqk", q, k) * scale
        p = _softmax(scores, axis=-1)
        o = torch.einsum("bhqk,bhkd->bhqd", p, v)
        return (lambda x, *d: x.permute(*d))(o, 0, 2, 1, 3).reshape(B, S, D) @ wo

    def _B_ref(x, w1, w2):
        h = torch.einsum("bsd,df->bsf", x, w1)
        h = _silu(h)
        out = torch.einsum("bsf,fd->bsd", h, w2)
        return out

    x = A_x
    g = _sigmoid((x * gate_w).sum(-1, keepdims=True))
    a = _A_ref(x, A_wqkv, A_wo)
    b = _B_ref(x, B_w1, B_w2)
    return g * a + (1 - g) * b
```

```python
import os, sys, subprocess, struct, ctypes
sys.path.insert(0, "cdna_kernels")
import numpy as np
import cdna_launch as cl

TEMPLATE = r"""
.amdgcn_target "amdgcn-amd-amdhsa--gfx950"
.text
.globl mb_kernel
.p2align 8
.type mb_kernel,@function
mb_kernel:
    s_load_dwordx2 s[4:5], s[0:1], 0
    v_and_b32 v1, 63, v0
    v_lshrrev_b32 v2, 6, v0
    s_nop 1
    v_readfirstlane_b32 s20, v2
    v_cvt_f32_u32 v3, v1
    v_mul_f32 v3, 0x3c000000, v3
{init}
    s_waitcnt lgkmcnt(0)
    s_mov_b32 s8, s4
    s_mov_b32 s9, s5
    s_mov_b32 s10, 0x100000
    s_mov_b32 s11, 0x00020000
    s_mov_b32 s12, {iters}
    s_barrier
    s_memtime s[14:15]
    s_waitcnt lgkmcnt(0)
.p2align 6
L_loop:
{body}
    s_sub_u32 s12, s12, 1
    s_cmp_lg_u32 s12, 0
    s_cbranch_scc1 L_loop
    s_nop 15
    s_nop 15
    s_memtime s[16:17]
    s_waitcnt lgkmcnt(0)
    s_sub_u32 s16, s16, s14
    s_mul_i32 s21, s2, {nwaves}
    s_add_u32 s21, s21, s20
    s_lshl_b32 s21, s21, 2
    v_mov_b32 v4, s16
    v_mov_b32 v5, s21
    v_cmp_eq_u32 vcc, 0, v1
    s_and_saveexec_b64 s[18:19], vcc
    buffer_store_dword v4, v5, s[8:11], 0 offen
    s_waitcnt vmcnt(0)
    s_endpgm
.section .rodata,"a"
.p2align 6
.amdhsa_kernel mb_kernel
  .amdhsa_next_free_vgpr {nvgpr}
  .amdhsa_next_free_sgpr 40
  .amdhsa_accum_offset {accum}
  .amdhsa_group_segment_fixed_size 0
  .amdhsa_kernarg_size 8
  .amdhsa_user_sgpr_count 2
  .amdhsa_user_sgpr_kernarg_segment_ptr 1
  .amdhsa_system_sgpr_workgroup_id_x 1
.end_amdhsa_kernel
.amdgpu_metadata
---
amdhsa.version: [1, 2]
amdhsa.kernels:
  - .name: mb_kernel
    .symbol: mb_kernel.kd
    .kernarg_segment_size: 8
    .kernarg_segment_align: 8
    .group_segment_fixed_size: 0
    .private_segment_fixed_size: 0
    .wavefront_size: 64
    .sgpr_count: 40
    .vgpr_count: {nvgpr}
    .max_flat_workgroup_size: 1024
    .args:
      - {{.name: kernargs, .size: 8, .offset: 0, .value_kind: by_value}}
...
.end_amdgpu_metadata
"""

def build(name, body, init="", iters=1000, nwaves=4, nvgpr=128):
    src = TEMPLATE.format(body=body, init=init, iters=iters, nwaves=nwaves, nvgpr=nvgpr, accum=nvgpr)
    s = f"mb_{name}.s"; co = f"mb_{name}.co"
    open(s, "w").write(src)
    r = subprocess.run(["clang", "-x", "assembler", "-target", "amdgcn-amd-amdhsa",
                        "-mcpu=gfx950", s, "-o", co], capture_output=True, text=True)
    if r.returncode: raise RuntimeError(r.stderr)
    return co

def run(name, body, init="", iters=1000, wps=1, nvgpr=128, grid=256, lds=0):
    nwaves = 4 * wps
    co = build(name, body, init, iters, nwaves, nvgpr)
    if not os.path.exists('/dev/kfd'):
        return None
    k = cl.AsmKernel(co, "mb_kernel")
    out = cl.DeviceBuffer(1 << 20)
    ka = struct.pack("<Q", out.ptr)
    for _ in range(3):
        k.launch((grid, 1, 1), (64 * nwaves, 1, 1), ka, lds)
    cl._check(cl._hip.hipDeviceSynchronize())
    r = out.to_numpy(np.uint32, (grid * nwaves,))
    k.unload(); out.free()
    return float(np.median(r)) / iters, float(r.min()) / iters, float(r.max()) / iters
```

```python
from mb import run
def rep(fmt, n, base=8, stride=1):
    return "\n".join("    " + fmt.format(d=base + i * stride, d1=base + i * stride + 1) for i in range(n))
tests = {}
tests["fma16"] = rep("v_fma_f32 v{d}, v3, v3, v{d}", 16)
tests["exp16"] = rep("v_exp_f32 v{d}, v3", 16)
tests["cvtpk16"] = rep("v_cvt_pk_bf16_f32 v{d}, v3, v3", 16)
tests["perm16"] = rep("v_perm_b32 v{d}, v3, v3, v4", 16)
tests["pkfma16"] = rep("v_pk_fma_f32 v[{d}:{d1}], v[4:5], v[4:5], v[{d}:{d1}]", 16, 8, 2)
tests["pkmul16"] = rep("v_pk_mul_f32 v[{d}:{d1}], v[4:5], v[4:5]", 16, 8, 2)
tests["max3_16"] = rep("v_max3_f32 v{d}, v3, v3, v4", 16)
tests["exp16_cvt8"] = rep("v_exp_f32 v{d}, v3", 16) + "\n" + rep("v_cvt_pk_bf16_f32 v{d}, v3, v3", 8, 40)
mix = []
for i in range(8):
    mix.append(f"    v_exp_f32 v{8+2*i}, v3")
    mix.append(f"    v_exp_f32 v{9+2*i}, v3")
    mix.append(f"    v_cvt_pk_bf16_f32 v{40+i}, v3, v3")
tests["exp2cvt1_x8"] = "\n".join(mix)
mix = []
for i in range(16):
    mix.append(f"    v_exp_f32 v{8+i}, v3")
    mix.append(f"    v_fma_f32 v{40+i}, v3, v3, v3")
tests["exp1fma1_x16"] = "\n".join(mix)
tests["exp16f16"] = rep("v_exp_f16 v{d}, v3", 16)
tests["mfma32x16_4"] = "\n".join(f"    v_mfma_f32_32x32x16_bf16 v[{64+16*i}:{79+16*i}], v[4:7], v[4:7], v[{64+16*i}:{79+16*i}]" for i in range(4))
tests["mfma32x8_4"] = "\n".join(f"    v_mfma_f32_32x32x8_bf16 v[{64+16*i}:{79+16*i}], v[4:5], v[4:5], v[{64+16*i}:{79+16*i}]" for i in range(4))
tests["mfma16x32_8"] = "\n".join(f"    v_mfma_f32_16x16x32_bf16 v[{64+4*i}:{67+4*i}], v[4:7], v[4:7], v[{64+4*i}:{67+4*i}]" for i in range(8))
tests["mfma16x16_8"] = "\n".join(f"    v_mfma_f32_16x16x16_bf16 v[{64+4*i}:{67+4*i}], v[4:5], v[4:5], v[{64+4*i}:{67+4*i}]" for i in range(8))
def attn_tile():
    L = []
    for m in range(4):
        L.append(f"    v_mfma_f32_32x32x16_bf16 v[{64+16*m}:{79+16*m}], v[4:7], v[4:7], v[{64+16*m}:{79+16*m}]")
        for i in range(2):
            L.append(f"    v_exp_f32 v{8+4*m+2*i}, v3")
            L.append(f"    v_exp_f32 v{9+4*m+2*i}, v3")
            L.append(f"    v_cvt_pk_bf16_f32 v{40+2*m+i}, v3, v3")
    return "\n".join(L)
tests["attn_tile"] = attn_tile()
init = "    v_mov_b32 v4, v3\n    v_mov_b32 v5, v3\n    v_mov_b32 v6, 0\n    v_mov_b32 v7, 0\n"
for n, b in tests.items():
    res = []
    for wps in (1, 2, 4):
        r = run(n, "\n".join([b] * 8), init=init, iters=500, wps=wps)
        r = tuple(x / 8 for x in r) if r else None
        res.append(r)
    if res[0] is not None:
        print(f"{n:16s} " + "  ".join(f"w{w}: max {r[2]:8.1f} (/wave {r[2]/w:7.1f})" for w, r in zip((1, 2, 4), res)))
```

```python
import struct, os
import numpy as np
from mb import build, cl
def body(n, ins):
    return "\n".join("    " + ins.format(d=8 + i % 32) for i in range(n))
have = os.path.exists('/dev/kfd')
if have:
    big = cl.DeviceBuffer(512 << 20)
    out = cl.DeviceBuffer(1 << 20)
    ka = struct.pack("<Q", out.ptr)
evco = build("evict", body(16000, "v_fma_f32 v{d}, v3, v4, v5"), "", 1, 4, 128)
if have: ev = cl.AsmKernel(evco, "mb_kernel")
for name, ins, n in (("add4B", "v_add_f32_e32 v{d}, v3, v4", 2048), ("fma8B", "v_fma_f32 v{d}, v3, v4, v5", 2048),
                     ("exp4B", "v_exp_f32 v{d}, v3", 2048)):
    for wps in (1, 2):
        co = build(name, body(n, ins), "", 1, 4 * wps, 128)
        if not have: continue
        k = cl.AsmKernel(co, "mb_kernel")
        def go(tag):
            k.launch((256, 1, 1), (256 * wps, 1, 1), ka, 0)
            cl._check(cl._hip.hipDeviceSynchronize())
            r = out.to_numpy(np.uint32, (256 * 4 * wps,))
            print(f"{name} wps{wps} {tag}: min {r.min()} med {int(np.median(r))} max {r.max()}")
        go("first"); go("again")
        ev.launch((256, 1, 1), (256, 1, 1), ka, 0); cl._check(cl._hip.hipDeviceSynchronize())
        go("after-evict")
        cl._check(cl._hip.hipMemset(big._ptr, 1, 512 << 20)); cl._check(cl._hip.hipDeviceSynchronize())
        go("after-memset")
        ev.launch((256, 1, 1), (256, 1, 1), ka, 0)
        cl._check(cl._hip.hipMemset(big._ptr, 1, 512 << 20)); cl._check(cl._hip.hipDeviceSynchronize())
        go("after-both")
        k.unload()
```

```python
import re

TRANS = ("v_exp_f32", "v_log_f32", "v_rcp_f32", "v_rsq_f32", "v_sqrt_f32", "v_sin_f32", "v_cos_f32",
         "v_exp_f16", "v_rcp_f16", "v_rcp_iflag_f32")

_reg_re = re.compile(r"^(v|a|s)(\d+)$")
_rng_re = re.compile(r"^(v|a|s)\[(\d+):(\d+)\]$")


def regs_of(tok):
    tok = tok.strip()
    tok = tok.lstrip("-")
    if tok.startswith("|") and tok.endswith("|"):
        tok = tok[1:-1]
    if tok.startswith("abs(") and tok.endswith(")"):
        tok = tok[4:-1]
    m = _reg_re.match(tok)
    if m:
        return {(m.group(1), int(m.group(2)))}
    m = _rng_re.match(tok)
    if m:
        return {(m.group(1), i) for i in range(int(m.group(2)), int(m.group(3)) + 1)}
    if tok == "vcc":
        return {("s", 106), ("s", 107)}
    if tok == "vcc_lo":
        return {("s", 106)}
    if tok == "vcc_hi":
        return {("s", 107)}
    if tok == "exec":
        return {("s", 126), ("s", 127)}
    if tok == "exec_lo":
        return {("s", 126)}
    if tok == "exec_hi":
        return {("s", 127)}
    if tok == "m0":
        return {("s", 124)}
    return set()


def split_ops(s):
    out, depth, cur = [], 0, ""
    for ch in s:
        if ch == "[" or ch == "(":
            depth += 1
        if ch == "]" or ch == ")":
            depth -= 1
        if ch == "," and depth == 0:
            out.append(cur.strip()); cur = ""
        else:
            cur += ch
    if cur.strip():
        out.append(cur.strip())
    return out


class Ins:
    def __init__(self, text):
        self.text = text
        t = text.split(";")[0].strip()
        self.label = None
        self.op = None
        self.w = set(); self.r = set()
        self.kind = "other"
        self.mfma = None
        self.states = 1
        self.target = None
        if t.endswith(":"):
            self.label = t[:-1]; self.states = 0; self.kind = "label"; return
        if t.startswith(".") or not t:
            self.states = 0; self.kind = "dir"; return
        parts = t.split(None, 1)
        op = parts[0]; self.op = op
        rest = parts[1] if len(parts) > 1 else ""
        ops = split_ops(rest)
        mods = []
        if ops:
            last = ops[-1].split()
            ops[-1] = last[0]; mods = last[1:]
        self.mods = mods
        base = op.replace("_e32", "").replace("_e64", "").replace("_dpp", "").replace("_sdwa", "")
        self.base = base
        R = lambda toks: set().union(*[regs_of(x) for x in toks]) if toks else set()
        if op == "s_nop":
            self.states = int(ops[0], 0) + 1; self.kind = "nop"
        elif op.startswith("v_mfma"):
            self.kind = "mfma"
            self.w = regs_of(ops[0]); self.A = regs_of(ops[1]); self.B = regs_of(ops[2]); self.C = regs_of(ops[3])
            self.r = self.A | self.B | self.C
            self.passes = 8 if "32x32" in op else 4
        elif op.startswith("v_"):
            self.kind = "valu"
            self.trans = base in TRANS
            self.dpp = any(m.startswith(("row_", "quad_perm", "wave_", "row_bcast")) for m in mods)
            if base.startswith("v_cmpx"):
                self.w = regs_of("exec"); self.r = R(ops)
            elif base.startswith("v_cmp"):
                self.w = regs_of(ops[0]); self.r = R(ops[1:])
            elif base.startswith("v_permlane") and "swap" in base:
                self.w = R(ops[:2]); self.r = R(ops[:2])
            elif base in ("v_add_co_u32", "v_sub_co_u32", "v_addc_co_u32", "v_subb_co_u32", "v_subrev_co_u32"):
                self.w = R(ops[:2]); self.r = R(ops[2:])
            elif base == "v_nop":
                pass
            else:
                self.w = regs_of(ops[0]); self.r = R(ops[1:])
                if base == "v_cndmask_b32" and len(ops) == 3:
                    self.r |= regs_of("vcc")
                if base in ("v_fmac_f32", "v_mac_f32", "v_pk_fmac_f16", "v_writelane_b32", "v_dot2c_f32_bf16") or self.dpp:
                    self.r |= self.w
        elif op.startswith("ds_"):
            self.kind = "ds"
            if "read" in op or "bpermute" in op or "swizzle" in op or "permute" in op:
                self.w = regs_of(ops[0]); self.r = R(ops[1:])
            else:
                self.r = R(ops)
        elif op.startswith("buffer_") or op.startswith("global_"):
            self.kind = "vmem"
            self.lds = "lds" in mods or "_lds_" in op
            self.store = "store" in op
            if self.lds:
                self.r = R(ops) | regs_of("m0")
            elif self.store:
                self.r = R(ops)
                self.data = regs_of(ops[0]) if op.startswith("buffer_") else regs_of(ops[1])
                self.wide = ("x3" in op or "x4" in op)
            else:
                self.w = regs_of(ops[0]); self.r = R(ops[1:])
        elif op.startswith("s_"):
            self.kind = "salu"
            if op.startswith("s_cbranch") or op == "s_branch":
                self.kind = "branch"; self.target = ops[0]
            elif op.startswith(("s_cmp", "s_waitcnt", "s_barrier", "s_endpgm", "s_setprio", "s_bitcmp")):
                self.r = R(ops)
            elif op.startswith(("s_load", "s_buffer_load")):
                self.kind = "smem"; self.w = regs_of(ops[0]); self.r = R(ops[1:])
            else:
                self.w = regs_of(ops[0]); self.r = R(ops[1:])
                if "saveexec" in op:
                    self.w |= regs_of("exec")


def V(s):
    return {x for x in s if x[0] in "va"}


def S(s):
    return {x for x in s if x[0] == "s"}


def need(p, c):
    n = 0
    if p.kind == "valu":
        wv, ws = V(p.w), S(p.w)
        if c.kind == "mfma" and wv & c.r: n = max(n, 2)
        if c.kind == "mfma" and ws & regs_of("exec"): n = max(n, 4)
        if c.kind == "valu":
            if p.trans and not c.trans and wv & c.r: n = max(n, 1)
            if ws & c.r: n = max(n, 4 if c.base in ("v_readlane_b32", "v_writelane_b32") else 2)
            if ws & regs_of("exec") and c.base in ("v_readlane_b32", "v_readfirstlane_b32", "v_writelane_b32"): n = max(n, 4)
            if ws & regs_of("exec") and (c.dpp or c.base.startswith("v_permlane")): n = max(n, 5)
            if c.base in ("v_readlane_b32", "v_readfirstlane_b32") and wv & c.r: n = max(n, 1)
            if c.base.startswith("v_permlane") and wv & c.r: n = max(n, 2)
            if c.dpp and wv & c.r: n = max(n, 2)
            if any(m.startswith(("op_sel", "dst_sel")) for m in p.mods) and wv & (c.r | c.w): n = max(n, 1)
        if c.kind == "vmem" and ws & c.r: n = max(n, 5)
        if p.trans and c.kind in ("vmem", "ds") and wv & c.r: n = max(n, 1)
    if p.kind == "mfma":
        big = 12 if p.passes == 8 else 8
        if c.kind == "mfma":
            if p.w & (c.A | c.B): n = max(n, big)
            if p.w & c.C and not (p.w == c.C and p.passes == c.passes): n = max(n, big - 2)
            if p.w & c.w and not (p.w == c.w and p.passes == c.passes): n = max(n, big - 2)
        elif c.kind in ("valu", "vmem", "ds"):
            if p.w & (c.r | c.w): n = max(n, big)
            if c.kind == "valu" and p.C & c.w: n = max(n, 7 if p.passes == 8 else 3)
    if p.kind == "salu" and regs_of("m0") & p.w and c.kind == "vmem" and c.lds: n = max(n, 1)
    if p.kind == "vmem" and p.store and p.wide and p.data & c.w:
        n = max(n, 2 if c.kind == "valu" else 1)
    return n


class Prog:
    def __init__(self):
        self.lines = []

    def __call__(self, text):
        for ln in text.split("\n"):
            ln = ln.strip()
            if ln:
                self.lines.append(ln)

    def label(self, name):
        self.lines.append(name + ":")

    def finish(self, verbose=True, name=""):
        ins = [Ins(l) for l in self.lines]
        changed = True
        total = 0
        while changed:
            changed = False
            labels = {x.label: i for i, x in enumerate(ins) if x.label}
            preds = {}
            for i, x in enumerate(ins):
                if x.kind == "branch" and x.target in labels:
                    preds.setdefault(labels[x.target], []).append(i)
            for i, c in enumerate(ins):
                if c.kind in ("label", "dir", "nop", "branch", "other"):
                    continue
                worst = 0
                stack = [(i - 1, 0)]
                seen = set()
                while stack:
                    j, d = stack.pop()
                    while j >= 0 and d < 13:
                        if (j, d) in seen: break
                        seen.add((j, d))
                        p = ins[j]
                        if p.kind == "label":
                            for b in preds.get(j, []):
                                stack.append((b, d))
                        if p.op in ("s_branch", "s_endpgm") and j != i - 1 and False:
                            break
                        if p.kind not in ("label", "dir"):
                            k = need(p, c) - d
                            if k > worst: worst = k; why = p
                        d += p.states
                        j -= 1
                        if j >= 0 and ins[j].op in ("s_branch", "s_endpgm"):
                            break
                if worst > 0:
                    if verbose and worst > 2:
                        print(f"[{name}] pad {worst} before: {c.text}   (after: {why.text})")
                    ins.insert(i, Ins(f"s_nop {worst - 1}"))
                    total += 1
                    changed = True
                    break
        out = []
        for x in ins:
            out.append(x.text if x.kind in ("label", "dir") else "    " + x.text)
        return "\n".join(out) + "\n"
```

```python
from asm import Prog

NAME = "gated_mix__softmax_full_mha__dense_activation_silu__prompt"

QOFF = 0x0000000
KVOFF = 0x0300000
KVT = 2576
KVH = 64 * KVT
HOFF = 0x0900000
OOFF = 0x0F00000
WFOFF = 0x1200000
GOFF = 0x1500000
BOFF = 0x1600000
WS_BYTES = 0x10000000


def srd(p, dst, lo, nbytes):
    p(f"s_mov_b32 s{dst}, s{lo}")
    p(f"s_mov_b32 s{dst+1}, s{lo+1}")
    p(f"s_mov_b32 s{dst+2}, {nbytes}")
    p(f"s_mov_b32 s{dst+3}, 0x00020000")


def vr(a, n):
    return f"v[{a}:{a+n-1}]"


def sr(a, n):
    return f"s[{a}:{a+n-1}]"


def interleave(main, extra, slots=None):
    out = []
    n = len(main)
    if slots is None:
        per = -(-len(extra) // n)
        slots = [per] * n
    k = 0
    for i, m in enumerate(main):
        out.append(m)
        for _ in range(slots[i]):
            if k < len(extra):
                out.append(extra[k]); k += 1
    out.extend(extra[k:])
    return out


def descriptor(label, nvgpr, nsgpr=102, accum=None):
    accum = accum if accum is not None else ((nvgpr + 3) // 4) * 4
    return f""".p2align 6
.amdhsa_kernel {label}
  .amdhsa_next_free_vgpr {nvgpr}
  .amdhsa_next_free_sgpr {nsgpr}
  .amdhsa_accum_offset {accum}
  .amdhsa_group_segment_fixed_size 0
  .amdhsa_kernarg_size 80
  .amdhsa_user_sgpr_count 2
  .amdhsa_user_sgpr_kernarg_segment_ptr 1
  .amdhsa_system_sgpr_workgroup_id_x 1
.end_amdhsa_kernel
"""


def header(label):
    return f""".globl {label}
.p2align 8
.type {label},@function
"""


def ssel(p, dst, a, b):
    p(f"s_mov_b32 s{dst}, {b}")
    p(f"s_cmov_b32 s{dst}, {a}")


import os
DIAG = bool(os.environ.get("DIAG"))
TSOFF = 0x1C00000


class Stamps:
    def __init__(self, p, kid, base=76):
        self.p, self.kid, self.base = p, kid, base

    def t(self, i, real=False):
        if DIAG:
            b = self.base + 2 * i
            self.p(f"s_mem{'real' if real else ''}time s[{b}:{b+1}]")

    def flush(self, n, srd_ws, s_wave, vt):
        if not DIAG:
            return
        p, b = self.p, self.base
        p("s_waitcnt vmcnt(0)")
        self.t(n - 2); self.t(n - 1, True)
        p("s_waitcnt lgkmcnt(0)")
        p(f"s_lshl_b32 s{b-1}, s2, 4")
        p(f"s_add_u32 s{b-1}, s{b-1}, s{s_wave}")
        p(f"s_lshl_b32 s{b-1}, s{b-1}, 6")
        p(f"s_add_u32 s{b-1}, s{b-1}, {TSOFF + self.kid * 256 * 16 * 64}")
        p("s_mov_b64 exec, 1")
        p(f"v_mov_b32 v{vt}, 0")
        for i in range(n):
            p(f"v_mov_b32 v{vt+1}, s{b+2*i}")
            p(f"buffer_store_dword v{vt+1}, v{vt}, s[{srd_ws}:{srd_ws+3}], s{b-1} offen offset:{4*i}")
```

```python
from common import *
import struct

LABEL = "gm_proj_kernel"
STAGE = 49152
LDS = 3 * STAGE

SRD_X, SRD_W, SRD_WS, SRD_T = 24, 28, 32, 36
S_WAVE, S_MB, S_SLOT, S_N0, S_LDW = 40, 41, 42, 43, 44
S_SX, S_SW, S_WR, S_CNT, S_DELTA, S_T0, S_T1, S_T2, S_T3 = 45, 46, 47, 48, 49, 50, 51, 52, 53
S_RL = 54
S_WSTEP = 57
S_E0 = 60

V_LANE, V_OX, V_OW, V_XA, V_WA = 1, 2, 3, 4, 8
V_T = 9
V_G = 16
SETA, SETB = 40, 64
ACC = 88


def f32bits(x):
    return struct.unpack("<I", struct.pack("<f", x))[0]


def relayout_issue(p):
    p(f"v_lshrrev_b32 v{V_T}, 5, v{V_LANE}")
    p(f"v_and_b32 v{V_T+1}, 31, v{V_LANE}")
    p(f"v_lshlrev_b32 v{V_T+1}, 1, v{V_T+1}")
    p(f"s_lshl_b32 s{S_T0}, s2, 2")
    p(f"s_add_u32 s{S_T0}, s{S_T0}, s{S_WAVE}")
    for f in range(3):
        t0, t1, t2, t3 = S_E0, S_E0 + 1, S_E0 + 2, S_E0 + 3
        ks, nt, hm, dd = S_E0 + 4, S_E0 + 5, S_E0 + 6, S_E0 + 7
        p(f"s_add_u32 s{t0}, s{S_T0}, {1024*f}")
        p(f"s_min_u32 s{t0}, s{t0}, 2719")
        p(f"s_mul_i32 s{ks}, s{t0}, 3277")
        p(f"s_lshr_b32 s{ks}, s{ks}, 16")
        p(f"s_mul_i32 s{t1}, s{ks}, 20")
        p(f"s_sub_u32 s{nt}, s{t0}, s{t1}")
        p(f"s_mul_i32 s{t2}, s{nt}, 136")
        p(f"s_add_u32 s{t2}, s{t2}, s{ks}")
        p(f"s_lshl_b32 s{t2}, s{t2}, 10")
        p(f"s_add_u32 s{S_RL+f}, s{t2}, {WFOFF}")
        p(f"s_sub_u32 s{t2}, s{ks}, 32")
        p(f"s_mul_i32 s{t2}, s{t2}, 80")
        p(f"s_add_u32 s{t2}, s{t2}, 16")
        p(f"s_cmp_lt_u32 s{ks}, 32")
        p(f"s_cselect_b32 s{t1}, s{t1}, s{t2}")
        ssel(p, hm, 4*1280, 40*1280)
        ssel(p, dd, 8*1280, 20*1280)
        p(f"s_sub_u32 s{t2}, s{ks}, 40")
        p(f"s_lshl_b32 s{t2}, s{t2}, 4")
        p(f"s_cmp_lt_u32 s{ks}, 40")
        p(f"s_cselect_b32 s{t1}, s{t1}, s{t2}")
        p(f"s_cselect_b32 s{hm}, s{hm}, {4*1280}")
        p(f"s_cselect_b32 s{dd}, s{dd}, {8*1280}")
        p(f"s_cselect_b32 s{SRD_T}, s8, s14")
        p(f"s_cselect_b32 s{SRD_T+1}, s9, s15")
        ssel(p, SRD_T+2, 640*1280, 1536*1280)
        p(f"s_mov_b32 s{SRD_T+3}, 0x00020000")
        p(f"s_mul_i32 s{t1}, s{t1}, 1280")
        p(f"s_lshl_b32 s{t2}, s{nt}, 6")
        p(f"s_add_u32 s{t1}, s{t1}, s{t2}")
        p(f"s_add_u32 s{t2}, s{t1}, s{dd}")
        p(f"v_mad_u32_u24 v{V_T+2}, v{V_T}, s{hm}, v{V_T+1}")
        for j in range(8):
            so = t1 if j < 4 else t2
            p(f"buffer_load_ushort v{V_G+8*f+j}, v{V_T+2}, {sr(SRD_T,4)}, s{so} offen offset:{(j&3)*1280}")


def relayout_store(p):
    p(f"v_lshlrev_b32 v{V_T}, 4, v{V_LANE}")
    for f in range(3):
        g = V_G + 8 * f
        for j in range(4):
            p(f"v_lshl_or_b32 v{g+j}, v{g+2*j+1}, 16, v{g+2*j}")
        p(f"buffer_store_dwordx4 {vr(g,4)}, v{V_T}, {sr(SRD_WS,4)}, s{S_RL+f} offen")


def dma_groups(NB):
    g = []
    for jj in range(8):
        g.append(f"s_add_u32 m0, s{S_WR}, {jj*4096}\n"
                 f"s_add_u32 s{S_T0}, s{S_SX}, {jj*40960}\n"
                 f"buffer_load_dwordx4 v{V_OX}, {sr(SRD_X,4)}, s{S_T0} offen lds")
    for nb in range(NB):
        g.append(f"s_add_u32 m0, s{S_WR}, {32768+nb*4096}\n"
                 f"s_add_u32 s{S_T0}, s{S_SW}, {nb*64}\n"
                 f"buffer_load_dwordx4 v{V_OW}, {sr(SRD_W,4)}, s{S_T0} offen lds")
    g.append(f"s_add_u32 s{S_SX}, s{S_SX}, 128\n"
             f"s_add_u32 s{S_SW}, s{S_SW}, s{S_WSTEP}")
    return g


def gemm_path(p, tag, MT, NT, NB, transposed):
    D = 8 + NB
    def xreg(st, mt): return st + 4 * mt
    def wreg(st, nt): return st + 4 * MT + 4 * nt
    def acc(mt, nt): return ACC + 16 * (mt * NT + nt)

    def mfmas(st, first=False):
        out = []
        for nt in range(NT):
            for mt in range(MT):
                a, b = (wreg(st, nt), xreg(st, mt)) if transposed else (xreg(st, mt), wreg(st, nt))
                c = "0" if first else vr(acc(mt, nt), 16)
                out.append(f"v_mfma_f32_32x32x16_bf16 {vr(acc(mt,nt),16)}, {vr(a,4)}, {vr(b,4)}, {c}")
        return out

    def reads(st, s):
        out = []
        for nt in range(NT):
            for h in range(2):
                out.append(f"ds_read_b64_tr_b16 {vr(wreg(st,nt)+2*h,2)}, v{V_WA} offset:{32768+nt*4096+s*1024+h*256}")
            if nt < MT:
                out.append(f"ds_read_b128 {vr(xreg(st,nt),4)}, v{V_XA+s} offset:{nt*4096}")
        for mt in range(NT, MT):
            out.append(f"ds_read_b128 {vr(xreg(st,mt),4)}, v{V_XA+s} offset:{mt*4096}")
        return out

    nm = MT * NT
    nr = MT + 2 * NT
    rslots = [2] * (nr // 2) + [0] * (nm - nr // 2)

    def stage(kind):
        p("s_waitcnt lgkmcnt(0)")
        for x in interleave(mfmas(SETA), reads(SETB, 1), rslots): p(x)
        p("s_waitcnt lgkmcnt(0)")
        for x in interleave(mfmas(SETB), reads(SETA, 2), rslots): p(x)
        p("s_waitcnt lgkmcnt(0)")
        for x in interleave(mfmas(SETA), reads(SETB, 3), rslots): p(x)
        if kind == "final":
            p("s_waitcnt lgkmcnt(0)")
            for x in mfmas(SETB): p(x)
            return
        p(f"s_cmp_ge_u32 s{S_WR}, {2*STAGE}")
        ssel(p, S_DELTA, -2*STAGE, STAGE)
        for s in range(4):
            p(f"v_add_u32 v{V_XA+s}, s{S_DELTA}, v{V_XA+s}")
        p(f"v_add_u32 v{V_WA}, s{S_DELTA}, v{V_WA}")
        p(f"s_waitcnt vmcnt({0 if kind == 'nodma0' else D}) lgkmcnt(0)")
        p("s_barrier")
        rd = reads(SETA, 0)
        if kind == "dma":
            dg = dma_groups(NB)
            ex = []
            slots = []
            ri = di = 0
            for i in range(nm):
                k = 0
                for _ in range(2):
                    if ri < len(rd): ex.append(rd[ri]); ri += 1; k += 1
                ndm = 1 if k else 2
                if i == nm - 1: ndm = len(dg)
                for _ in range(ndm):
                    if di < len(dg): ex.append(dg[di]); di += 1; k += 1
                slots.append(k)
            for x in interleave(mfmas(SETB), ex, slots): p(x)
        else:
            for x in interleave(mfmas(SETB), rd, rslots): p(x)
        p(f"s_add_u32 s{S_WR}, s{S_WR}, s{S_DELTA}")

    for g in dma_groups(NB): p(g)
    p(f"s_add_u32 s{S_WR}, s{S_WR}, {STAGE}")
    relayout_issue(p)
    for g in dma_groups(NB): p(g)
    p(f"s_add_u32 s{S_WR}, s{S_WR}, {STAGE}")
    for g in dma_groups(NB): p(g)
    p(f"s_sub_u32 s{S_WR}, s{S_WR}, {2*STAGE}")
    for i in range(16 * nm):
        p(f"v_mov_b32 v{ACC+i}, 0")
    ST.t(2)
    p(f"s_waitcnt vmcnt({24+2*D})")
    p("s_barrier")
    ST.t(3)
    for x in reads(SETA, 0): p(x)
    p(f"s_mov_b32 s{S_CNT}, 7")
    p.label(f"L1_{tag}_loop")
    stage("dma")
    p(f"s_sub_u32 s{S_CNT}, s{S_CNT}, 1")
    p(f"s_cmp_lg_u32 s{S_CNT}, 0")
    p(f"s_cbranch_scc1 L1_{tag}_loop")
    ST.t(4)
    stage("nodmaD")
    stage("nodma0")
    stage("final")
    ST.t(5)
    return acc


def lane_consts(p, wrow_expr_sgpr, wcol_blocks_sgpr):
    t = V_T
    p(f"v_and_b32 v{t}, 31, v{V_LANE}")
    p(f"v_lshrrev_b32 v{t+1}, 5, v{V_LANE}")
    p(f"v_bfe_u32 v{t+2}, v{V_LANE}, 1, 3")
    p(f"v_add_u32 v{t}, s{wrow_expr_sgpr}, v{t}")
    p(f"v_lshlrev_b32 v{t}, 7, v{t}")
    for s in range(4):
        p(f"v_or_b32 v{t+3}, {2*s}, v{t+1}")
        p(f"v_xor_b32 v{t+3}, v{t+3}, v{t+2}")
        p(f"v_lshl_add_u32 v{V_XA+s}, v{t+3}, 4, v{t}")
    p(f"v_bfe_u32 v{t}, v{V_LANE}, 2, 2")
    p(f"v_lshl_add_u32 v{t}, v{t+1}, 3, v{t}")
    p(f"v_lshlrev_b32 v{t}, 6, v{t}")
    p(f"v_bfe_u32 v{t+2}, v{V_LANE}, 4, 1")
    p(f"v_lshl_add_u32 v{t}, v{t+2}, 5, v{t}")
    p(f"v_and_b32 v{t+2}, 3, v{V_LANE}")
    p(f"v_lshl_add_u32 v{t}, v{t+2}, 3, v{t}")
    p(f"s_lshl_b32 s{S_T0}, s{wcol_blocks_sgpr}, 12")
    p(f"v_add_u32 v{V_WA}, s{S_T0}, v{t}")


def build():
    p = Prog()
    p.label(LABEL)
    p("s_cmp_ge_u32 s2, 256")
    p("s_cbranch_scc1 L1_end")
    global ST
    ST = Stamps(p, 0)
    ST.t(0, True); ST.t(1)
    p("s_load_dwordx16 s[4:19], s[0:1], 0")
    p("s_load_dwordx2 s[20:21], s[0:1], 72")
    p(f"v_and_b32 v{V_LANE}, 63, v0")
    p(f"v_lshrrev_b32 v{V_T}, 6, v0")
    p(f"v_readfirstlane_b32 s{S_WAVE}, v{V_T}")
    p(f"s_and_b32 s{S_T0}, s2, 7")
    p(f"s_lshr_b32 s{S_T1}, s2, 3")
    p(f"s_and_b32 s{S_MB}, s{S_T0}, 1")
    p(f"s_lshl_b32 s{S_MB}, s{S_MB}, 2")
    p(f"s_and_b32 s{S_T2}, s{S_T1}, 3")
    p(f"s_add_u32 s{S_MB}, s{S_MB}, s{S_T2}")
    p(f"s_lshr_b32 s{S_SLOT}, s{S_T0}, 1")
    p(f"s_lshl_b32 s{S_SLOT}, s{S_SLOT}, 3")
    p(f"s_lshr_b32 s{S_T2}, s{S_T1}, 2")
    p(f"s_add_u32 s{S_SLOT}, s{S_SLOT}, s{S_T2}")
    t = V_T
    p(f"s_and_b32 s{S_T0}, s{S_WAVE}, 1")
    p(f"s_lshl_b32 s{S_T0}, s{S_T0}, 2")
    p(f"v_lshrrev_b32 v{t}, 4, v{V_LANE}")
    p(f"v_add_u32 v{t}, s{S_T0}, v{t}")
    p(f"v_and_b32 v{t+1}, 7, v{V_LANE}")
    p(f"v_xor_b32 v{t}, v{t}, v{t+1}")
    p(f"v_lshlrev_b32 v{t}, 4, v{t}")
    p(f"v_lshrrev_b32 v{t+1}, 3, v{V_LANE}")
    p(f"v_mul_u32_u24 v{t+1}, 1280, v{t+1}")
    p(f"v_add_u32 v{V_OX}, v{t}, v{t+1}")
    p(f"s_lshl_b32 s{S_T0}, s{S_MB}, 8")
    p(f"s_lshl_b32 s{S_T1}, s{S_WAVE}, 3")
    p(f"s_add_u32 s{S_T0}, s{S_T0}, s{S_T1}")
    p(f"s_mul_i32 s{S_SX}, s{S_T0}, 1280")
    p(f"s_lshl_b32 s{S_WR}, s{S_WAVE}, 10")
    p("s_waitcnt lgkmcnt(0)")
    srd(p, SRD_X, 4, 2048 * 1280)
    srd(p, SRD_WS, 20, WS_BYTES)
    p(f"s_cmp_eq_u32 s{S_SLOT}, 31")
    p("s_cbranch_scc1 L1_gate")
    p(f"s_lshl_b32 s{S_T0}, s{S_SLOT}, 7")
    p(f"s_sub_u32 s{S_T1}, s{S_SLOT}, 15")
    p(f"s_mul_i32 s{S_T1}, s{S_T1}, 96")
    p(f"s_cmp_lt_u32 s{S_SLOT}, 15")
    p(f"s_cselect_b32 s{SRD_W}, s6, s12")
    p(f"s_cselect_b32 s{SRD_W+1}, s7, s13")
    ssel(p, SRD_W+2, 640*3840, 640*3072)
    p(f"s_mov_b32 s{SRD_W+3}, 0x00020000")
    ssel(p, S_LDW, 3840, 3072)
    p(f"s_cselect_b32 s{S_N0}, s{S_T0}, s{S_T1}")
    p(f"s_lshl_b32 s{S_WSTEP}, s{S_LDW}, 6")
    p(f"v_lshrrev_b32 v{t}, 2, v{V_LANE}")
    p(f"v_mul_u32_u24 v{t}, s{S_LDW}, v{t}")
    p(f"v_and_b32 v{t+1}, 3, v{V_LANE}")
    p(f"v_lshl_add_u32 v{V_OW}, v{t+1}, 4, v{t}")
    p(f"s_lshl_b32 s{S_T0}, s{S_WAVE}, 4")
    p(f"s_mul_i32 s{S_T0}, s{S_T0}, s{S_LDW}")
    p(f"s_lshl_b32 s{S_T1}, s{S_N0}, 1")
    p(f"s_add_u32 s{S_SW}, s{S_T0}, s{S_T1}")
    p(f"s_cmp_ge_u32 s{S_SLOT}, 15")
    p("s_cbranch_scc1 L1_h")
    WM, WN = S_E0 + 10, S_E0 + 11
    p(f"s_and_b32 s{WM}, s{S_WAVE}, 1")
    p(f"s_lshr_b32 s{WN}, s{S_WAVE}, 1")
    p(f"s_lshl_b32 s{S_T2}, s{WM}, 7")
    p(f"s_lshl_b32 s{S_T3}, s{WN}, 1")
    lane_consts(p, S_T2, S_T3)
    p(f"s_cmp_ge_u32 s{S_SLOT}, 10")
    p("s_cbranch_scc1 L1_v")

    acc = gemm_path(p, "qk", 4, 2, 4, True)
    e = S_E0
    SC, HS, TS, BASE, CGB = e, e + 2, e + 3, e + 4, e + 5
    qs = f32bits(20 ** -0.5 * 1.4426950408889634)
    p(f"s_cmp_lt_u32 s{S_SLOT}, 5")
    p(f"s_cselect_b32 s{SC}, {qs:#x}, 1.0")
    ssel(p, HS, 64*1280, KVH)
    ssel(p, TS, 1280, KVT)
    p(f"s_cselect_b32 s{BASE}, {QOFF}, {KVOFF}")
    p(f"s_cselect_b32 s{S_T0}, 0, 640")
    p(f"s_sub_u32 s{CGB}, s{S_N0}, s{S_T0}")
    p(f"s_lshr_b32 s{CGB}, s{CGB}, 2")
    p(f"s_lshl_b32 s{S_T0}, s{WN}, 4")
    p(f"s_add_u32 s{CGB}, s{CGB}, s{S_T0}")
    p(f"s_lshl_b32 s{S_T0}, s{S_MB}, 3")
    p(f"s_lshl_b32 s{S_T1}, s{WM}, 2")
    p(f"s_add_u32 s{S_T0}, s{S_T0}, s{S_T1}")
    p(f"s_mul_i32 s{S_T0}, s{S_T0}, s{TS}")
    p(f"s_add_u32 s{BASE}, s{BASE}, s{S_T0}")
    hf, t8, t16, sc = SETA, SETA + 1, SETA + 2, SETA + 4
    AD = SETA + 8
    tmp = SETA + 16
    p(f"v_lshrrev_b32 v{hf}, 5, v{V_LANE}")
    p(f"v_and_b32 v{t8}, 31, v{V_LANE}")
    p(f"v_lshlrev_b32 v{t16}, 4, v{t8}")
    p(f"v_lshlrev_b32 v{t8}, 3, v{t8}")
    p(f"v_mov_b32 v{sc}, s{SC}")
    p(f"v_mov_b32 v{sc+1}, s{SC}")
    for nt in range(2):
        for t4 in range(4):
            a = AD + nt * 4 + t4
            p(f"s_add_u32 s{S_T0}, s{CGB}, {8*nt+2*t4}")
            p(f"v_add_u32 v{tmp}, s{S_T0}, v{hf}")
            p(f"v_mul_u32_u24 v{tmp+1}, 205, v{tmp}")
            p(f"v_lshrrev_b32 v{tmp+1}, 10, v{tmp+1}")
            p(f"v_mul_u32_u24 v{tmp+2}, 5, v{tmp+1}")
            p(f"v_sub_u32 v{tmp}, v{tmp}, v{tmp+2}")
            p(f"v_cmp_eq_u32 vcc, 4, v{tmp}")
            p(f"v_mul_u32_u24 v{tmp+1}, s{HS}, v{tmp+1}")
            p(f"v_lshrrev_b32 v{tmp+2}, 1, v{tmp}")
            p(f"v_lshl_add_u32 v{tmp+1}, v{tmp+2}, 9, v{tmp+1}")
            p(f"v_and_b32 v{tmp+2}, 1, v{tmp}")
            p(f"v_lshl_add_u32 v{tmp+1}, v{tmp+2}, 3, v{tmp+1}")
            p(f"v_cndmask_b32 v{tmp+2}, v{t16}, v{t8}, vcc")
            p(f"v_add_u32 v{a}, v{tmp+1}, v{tmp+2}")
    for mt in range(4):
        for nt in range(2):
            for t4 in range(4):
                r = acc(mt, nt) + 4 * t4
                p(f"v_pk_mul_f32 {vr(r,2)}, {vr(r,2)}, {vr(sc,2)}")
                p(f"v_pk_mul_f32 {vr(r+2,2)}, {vr(r+2,2)}, {vr(sc,2)}")
                p(f"v_cvt_pk_bf16_f32 v{r}, v{r}, v{r+1}")
                p(f"v_cvt_pk_bf16_f32 v{r+1}, v{r+2}, v{r+3}")
                p(f"buffer_store_dwordx2 {vr(r,2)}, v{AD+nt*4+t4}, {sr(SRD_WS,4)}, s{BASE} offen")
        p(f"s_add_u32 s{BASE}, s{BASE}, s{TS}")
    p("s_branch L1_tail")

    p.label("L1_v")
    acc = gemm_path(p, "v", 4, 2, 4, False)
    BASE, MSK = e + 4, e + 6
    p(f"s_lshl_b32 s{S_T0}, s{S_MB}, 3")
    p(f"s_lshl_b32 s{S_T1}, s{WM}, 2")
    p(f"s_add_u32 s{S_T0}, s{S_T0}, s{S_T1}")
    p(f"s_mul_i32 s{S_T0}, s{S_T0}, {KVT}")
    p(f"s_add_u32 s{BASE}, s{S_T0}, {KVOFF+1280}")
    p(f"s_lshl_b32 s{S_T0}, s{WN}, 6")
    p(f"s_add_u32 s{S_T0}, s{S_T0}, s{S_N0}")
    p(f"s_sub_u32 s{S_T0}, s{S_T0}, 1280")
    hf, col, one = SETA, SETA + 1, SETA + 4
    AD = SETA + 8
    tmp = SETA + 16
    p(f"v_lshrrev_b32 v{hf}, 5, v{V_LANE}")
    p(f"v_and_b32 v{col}, 31, v{V_LANE}")
    p(f"v_add_u32 v{col}, s{S_T0}, v{col}")
    for i in range(4):
        p(f"v_mov_b32 v{one+i}, 0x3f803f80")
    for nt in range(2):
        p(f"v_add_u32 v{tmp}, {32*nt}, v{col}")
        p(f"v_mul_u32_u24 v{tmp+1}, 3277, v{tmp}")
        p(f"v_lshrrev_b32 v{tmp+1}, 16, v{tmp+1}")
        p(f"v_mul_u32_u24 v{tmp+2}, 20, v{tmp+1}")
        p(f"v_sub_u32 v{tmp}, v{tmp}, v{tmp+2}")
        p(f"v_mul_u32_u24 v{tmp+1}, {KVH}, v{tmp+1}")
        p(f"v_lshl_add_u32 v{tmp+1}, v{tmp}, 4, v{tmp+1}")
        p(f"v_mul_u32_u24 v{tmp+2}, 320, v{hf}")
        p(f"v_add_u32 v{AD+nt}, v{tmp+1}, v{tmp+2}")
        p(f"v_or_b32 v{tmp}, v{tmp}, v{hf}")
        p(f"v_cmp_eq_u32 {sr(MSK+2*nt,2)}, 0, v{tmp}")
    for mt in range(4):
        for nt in range(2):
            for g in range(2):
                r = acc(mt, nt) + 8 * g
                for j in range(4):
                    p(f"v_cvt_pk_bf16_f32 v{r+j}, v{r+2*j}, v{r+2*j+1}")
                p(f"buffer_store_dwordx4 {vr(r,4)}, v{AD+nt}, {sr(SRD_WS,4)}, s{BASE} offen offset:{640*g}")
            p(f"s_mov_b64 exec, {sr(MSK+2*nt,2)}")
            p(f"buffer_store_dwordx4 {vr(one,4)}, v{AD+nt}, {sr(SRD_WS,4)}, s{BASE} offen offset:1280")
            p("s_mov_b64 exec, -1")
        p(f"s_add_u32 s{BASE}, s{BASE}, {KVT}")
    p("s_branch L1_tail")

    p.label("L1_h")
    p(f"s_lshl_b32 s{S_T2}, s{S_WAVE}, 6")
    p(f"s_mov_b32 s{S_T3}, 0")
    lane_consts(p, S_T2, S_T3)
    acc = gemm_path(p, "h", 2, 3, 3, True)
    BASE = e + 4
    p(f"s_lshl_b32 s{S_T0}, s{S_MB}, 3")
    p(f"s_lshl_b32 s{S_T1}, s{S_WAVE}, 1")
    p(f"s_add_u32 s{S_T0}, s{S_T0}, s{S_T1}")
    p(f"s_mul_i32 s{S_T0}, s{S_T0}, 96")
    p(f"s_lshr_b32 s{S_T1}, s{S_N0}, 4")
    p(f"s_add_u32 s{S_T0}, s{S_T0}, s{S_T1}")
    p(f"s_lshl_b32 s{S_T0}, s{S_T0}, 10")
    p(f"s_add_u32 s{BASE}, s{S_T0}, {HOFF}")
    nl, on, ad = SETA, SETA + 2, SETA + 4
    tmp = SETA + 8
    p(f"v_mov_b32 v{nl}, {f32bits(-1.4426950408889634):#x}")
    p(f"v_mov_b32 v{nl+1}, {f32bits(-1.4426950408889634):#x}")
    p(f"v_mov_b32 v{on}, 1.0")
    p(f"v_mov_b32 v{on+1}, 1.0")
    p(f"v_lshlrev_b32 v{ad}, 4, v{V_LANE}")
    k = 0
    for mt in range(2):
        for nt in range(3):
            p(f"s_add_u32 s{S_T0}, s{BASE}, {(mt*96+2*nt)*1024}")
            for g in range(2):
                r = acc(mt, nt) + 8 * g
                tt = tmp + 8 * (k & 1); k += 1
                for j in range(4):
                    p(f"v_pk_mul_f32 {vr(tt+2*j,2)}, {vr(r+2*j,2)}, {vr(nl,2)}")
                for j in range(8):
                    p(f"v_exp_f32 v{tt+j}, v{tt+j}")
                for j in range(4):
                    p(f"v_pk_add_f32 {vr(tt+2*j,2)}, {vr(tt+2*j,2)}, {vr(on,2)}")
                for j in range(8):
                    p(f"v_rcp_f32 v{tt+j}, v{tt+j}")
                for j in range(4):
                    p(f"v_pk_mul_f32 {vr(tt+2*j,2)}, {vr(tt+2*j,2)}, {vr(r+2*j,2)}")
                for j in range(4):
                    p(f"v_cvt_pk_bf16_f32 v{r+j}, v{tt+2*j}, v{tt+2*j+1}")
                p(f"buffer_store_dwordx4 {vr(r,4)}, v{ad}, {sr(SRD_WS,4)}, s{S_T0} offen offset:{1024*g}")
    p("s_branch L1_tail")

    p.label("L1_gate")
    relayout_issue(p)
    srd(p, SRD_W, 16, 1280)
    c16, ro, res = 9, 10, 11
    GW = 40
    GU = 60
    XB = 100
    p(f"v_and_b32 v{c16}, 15, v{V_LANE}")
    p(f"v_lshlrev_b32 v{ro}, 4, v{c16}")
    for i in range(5):
        p(f"buffer_load_dwordx4 {vr(GW+4*i,4)}, v{ro}, {sr(SRD_W,4)}, 0 offen offset:{256*i}")
    p(f"v_lshrrev_b32 v{12}, 4, v{V_LANE}")
    p(f"v_mul_u32_u24 v{12}, 1280, v{12}")
    p(f"v_add_u32 v{ro}, v{ro}, v{12}")
    p(f"s_lshl_b32 s{S_T0}, s{S_MB}, 8")
    p(f"s_lshl_b32 s{S_T1}, s{S_WAVE}, 6")
    p(f"s_add_u32 s{S_T2}, s{S_T0}, s{S_T1}")
    p(f"s_mul_i32 s{S_T0}, s{S_T2}, 1280")
    p(f"v_mov_b32 v{res}, 0")
    NBUF = 7
    def xload(it):
        b = XB + 20 * (it % NBUF)
        p(f"s_add_u32 s{S_T1}, s{S_T0}, {it*4*1280}")
        for i in range(5):
            p(f"buffer_load_dwordx4 {vr(b+4*i,4)}, v{ro}, {sr(SRD_X,4)}, s{S_T1} offen offset:{256*i}")
    for it in range(NBUF):
        xload(it)
    p(f"s_waitcnt vmcnt({5*NBUF})")
    for i in range(20):
        p(f"v_lshlrev_b32 v{GU+2*i}, 16, v{GW+i}")
        p(f"v_and_b32 v{GU+2*i+1}, 0xffff0000, v{GW+i}")
    for it in range(16):
        b = XB + 20 * (it % NBUF)
        left = min(NBUF - 1, 15 - it)
        p(f"s_waitcnt vmcnt({5*left})")
        a0, a1, u0, u1 = 12, 13, 14, 15
        for i in range(20):
            p(f"v_lshlrev_b32 v{u0}, 16, v{b+i}")
            p(f"v_and_b32 v{u1}, 0xffff0000, v{b+i}")
            if i == 0:
                p(f"v_mul_f32 v{a0}, v{u0}, v{GU}")
                p(f"v_mul_f32 v{a1}, v{u1}, v{GU+1}")
            else:
                p(f"v_fmac_f32 v{a0}, v{u0}, v{GU+2*i}")
                p(f"v_fmac_f32 v{a1}, v{u1}, v{GU+2*i+1}")
        if it + NBUF < 16:
            xload(it + NBUF)
        p(f"v_add_f32 v{a0}, v{a0}, v{a1}")
        for sh in (8, 4, 2, 1):
            p(f"v_add_f32_dpp v{a0}, v{a0}, v{a0} row_ror:{sh} row_mask:0xf bank_mask:0xf")
        p(f"v_cmp_eq_u32 vcc, {it}, v{c16}")
        p(f"v_cndmask_b32 v{res}, v{res}, v{a0}, vcc")
    p(f"v_mul_f32 v{res}, {f32bits(-1.4426950408889634):#x}, v{res}")
    p(f"v_exp_f32 v{res}, v{res}")
    p(f"v_add_f32 v{res}, 1.0, v{res}")
    p(f"v_rcp_f32 v{res}, v{res}")
    p(f"v_lshrrev_b32 v12, 4, v{V_LANE}")
    p(f"v_lshl_add_u32 v12, v{c16}, 2, v12")
    p(f"v_lshlrev_b32 v12, 2, v12")
    p(f"s_lshl_b32 s{S_T2}, s{S_T2}, 2")
    p(f"s_add_u32 s{S_T2}, s{S_T2}, {GOFF}")
    p(f"buffer_store_dword v{res}, v12, {sr(SRD_WS,4)}, s{S_T2} offen")

    p.label("L1_tail")
    ST.t(6)
    relayout_store(p)
    ST.flush(9, SRD_WS, S_WAVE, 2)
    p.label("L1_end")
    p("s_endpgm")
    return header(LABEL) + p.finish(name="k1"), descriptor(LABEL, 240)
```

```python
from common import *

LABEL = "gm_attn_kernel"
LDS = 163840
BLOCK = 768
CNT = 64 * KVT - 1280

SRD_WS = 8
S_WAVE, S_HEAD, S_QT, S_T0, S_T1, S_T2, S_CNT, S_SRC, S_KV, S_SPIN = 12, 13, 14, 15, 16, 17, 18, 19, 20, 21
S_MT, S_NG, S_SA, S_SW = 24, 25, 26, 27

V_LANE = 1
V_KA, V_K2A, V_VA0, V_VA1 = 2, 3, 4, 5
V_T = 6
Q1, Q2 = 12, 16
V_CA, V_ONE = 18, 19
K1, K2, V0, V1 = 20, 24, 28, 32
SS = [40, 56]
PP = 72
OO = 80
V_GATE = 96
NV = 168
UNROLL = 8
PRIO = {0: 2, 3: 1, 6: 0}


def mf(d, a, b, c):
    cc = "0" if c is None else vr(c, 16)
    return f"v_mfma_f32_32x32x16_bf16 {vr(d,16)}, {vr(a,4)}, {vr(b,4)}, {cc}"


def mf8(d, a, b):
    return f"v_mfma_f32_32x32x8_bf16 {vr(d,16)}, {vr(a,2)}, {vr(b,2)}, {vr(d,16)}"


def lane_offsets(p, kbase, vbase):
    t = V_T
    p(f"v_and_b32 v{t}, 31, v{V_LANE}")
    p(f"v_lshrrev_b32 v{t+1}, 5, v{V_LANE}")
    p(f"v_lshlrev_b32 v{V_KA}, 4, v{V_LANE}")
    p(f"v_lshlrev_b32 v{V_K2A}, 3, v{t}")
    p(f"v_lshl_add_u32 v{V_K2A}, v{t+1}, 2, v{V_K2A}")
    p(f"v_add_u32 v{V_K2A}, {kbase+1024}, v{V_K2A}")
    if kbase:
        p(f"v_add_u32 v{V_KA}, {kbase}, v{V_KA}")
    p(f"v_mul_u32_u24 v{t+2}, 320, v{t+1}")
    p(f"v_lshl_add_u32 v{t+2}, v{t}, 4, v{t+2}")
    if vbase:
        p(f"v_add_u32 v{t+2}, {vbase}, v{t+2}")
    p(f"v_add_u32 v{t+3}, 640, v{t+2}")
    p(f"v_mov_b32 v{t+4}, {vbase+1280}")
    p(f"v_cmp_gt_u32 vcc, 20, v{t}")
    p(f"v_cndmask_b32 v{V_VA0}, v{t+4}, v{t+2}, vcc")
    p(f"v_cndmask_b32 v{V_VA1}, v{t+4}, v{t+3}, vcc")


def set_shift(p, m):
    t = V_T
    p(f"v_mov_b32 v{t}, v{m}")
    p(f"v_permlane32_swap_b32 v{m}, v{t}")
    p(f"v_max_f32 v{m}, v{m}, v{t}")
    p(f"v_cvt_pk_bf16_f32 v{m}, -v{m}, 0")
    p(f"v_cmp_gt_u32 vcc, 32, v{V_LANE}")
    p(f"v_cndmask_b32 v{Q2+1}, 0, v{m}, vcc")


def max16(p, dst, s, first):
    k = 0
    if first:
        p(f"v_max3_f32 v{dst}, v{s}, v{s+1}, v{s+2}")
        p(f"v_max_f32 v{dst}, v{dst}, v{s+3}")
        k = 4
    while k < 16:
        p(f"v_max3_f32 v{dst}, v{dst}, v{s+k}, v{s+k+1}")
        k += 2


_uid = [0]


def poll(p, off, want, vt):
    _uid[0] += 1
    n = _uid[0]
    p(f"s_mov_b32 s{S_SPIN}, 0x40000")
    p.label(f"L2_poll{n}")
    p(f"ds_read_b32 v{vt}, v{V_CA} offset:{off}")
    p("s_waitcnt lgkmcnt(0)")
    p(f"v_readfirstlane_b32 s{S_T0}, v{vt}")
    p(f"s_cmp_eq_u32 s{S_T0}, {want}")
    p(f"s_cbranch_scc1 L2_got{n}")
    p("s_sleep 1")
    p(f"s_sub_u32 s{S_SPIN}, s{S_SPIN}, 1")
    p(f"s_cmp_lg_u32 s{S_SPIN}, 0")
    p(f"s_cbranch_scc1 L2_poll{n}")
    p.label(f"L2_got{n}")


def signal(p, off):
    p("s_mov_b64 exec, 1")
    p(f"ds_add_u32 v{V_CA}, v{V_ONE} offset:{off}")
    p("s_mov_b64 exec, -1")


def tile(p, u, left):
    b = u & 1
    s, sn = SS[b], SS[b ^ 1]
    ex = lambda i: f"v_exp_f32 v{s+i}, v{s+i}"
    def cv(j):
        src = s if j < 6 else sn
        return f"v_cvt_pk_bf16_f32 v{PP+j}, v{src+2*j}, v{src+2*j+1}"
    M = [mf(OO, V0, PP, OO), mf(sn, K1, Q1, None), mf8(sn, K2, Q2), mf(OO, V1, PP + 4, OO)]
    R = [f"ds_read_b128 {vr(V0,4)}, v{V_VA0} offset:{u*KVT}",
         f"ds_read_b128 {vr(K1,4)}, v{V_KA} offset:{u*KVT}",
         f"ds_read_b32 v{K2}, v{V_K2A} offset:{u*KVT}",
         f"ds_read_b128 {vr(V1,4)}, v{V_VA1} offset:{u*KVT}"]
    W = [None, 2, None, 2]
    if left < 2:
        R[1] = R[2] = None
        W = [None, 1, None, 1] if left == 1 else [None, None, 1, 0]
    if left < 1:
        M[1] = M[2] = None
    if u in PRIO:
        p(f"s_setprio {PRIO[u]}")
    for g in range(4):
        e = [ex(4 * g + i) for i in range(4)]
        for x in (M[g], R[g], cv((2 * g - 2) % 8), e[0], cv((2 * g - 1) % 8), e[1], e[2], e[3]):
            if x: p(x)
        if W[g] is not None:
            p(f"s_waitcnt lgkmcnt({W[g]})")


def attention(p, ST):
    ws = sr(SRD_WS, 4)
    t = V_T
    lane_offsets(p, 0, 0)
    p(f"v_and_b32 v{t+3}, 31, v{V_LANE}")
    p(f"v_lshlrev_b32 v{t+3}, 2, v{t+3}")
    p(f"s_lshl_b32 s{S_T0}, s{S_HEAD}, 6")
    p(f"s_add_u32 s{S_T0}, s{S_T0}, s{S_QT}")
    p(f"s_mul_i32 s{S_T0}, s{S_T0}, 1280")
    p(f"s_lshl_b32 s{S_T2}, s{S_QT}, 7")
    p(f"s_add_u32 s{S_T2}, s{S_T2}, {GOFF}")
    p(f"buffer_load_dwordx4 {vr(Q1,4)}, v{V_KA}, {ws}, s{S_T0} offen")
    p(f"buffer_load_dwordx4 {vr(K1,4)}, v{V_KA}, {ws}, s{S_KV} offen")
    p(f"buffer_load_dword v{Q2}, v{V_K2A}, {ws}, s{S_T0} offen")
    p(f"buffer_load_dword v{K2}, v{V_K2A}, {ws}, s{S_KV} offen")
    p(f"buffer_load_dword v{V_GATE}, v{t+3}, {ws}, s{S_T2} offen")
    p("s_barrier")
    p(f"v_add_u32 v{V_KA}, {2*KVT-1280}, v{V_KA}")
    p(f"v_add_u32 v{V_K2A}, {2*KVT-1280}, v{V_K2A}")
    p(f"v_mov_b32 v{K2+1}, 0x3f80")
    p(f"v_mov_b32 v{Q2+1}, 0")
    for r in list(range(V0, V0 + 8)) + list(range(PP, PP + 8)) + list(range(OO, OO + 16)) + list(range(SS[1] + 12, SS[1] + 16)):
        p(f"v_mov_b32 v{r}, 0")
    p(f"s_mov_b32 s{S_CNT}, 0")
    ST.t(2)
    p("s_waitcnt vmcnt(1)")
    p(mf(SS[0], K1, Q1, None))
    p(mf8(SS[0], K2, Q2))
    max16(p, t + 5, SS[0], True)
    set_shift(p, t + 5)
    p(mf(SS[0], K1, Q1, None))
    p(mf8(SS[0], K2, Q2))
    ST.t(3)
    poll(p, 0, 4, t)
    p(f"v_subrev_u32 v{t}, {KVT}, v{V_KA}")
    p(f"v_subrev_u32 v{t+1}, {KVT}, v{V_K2A}")
    p(f"ds_read_b128 {vr(K1,4)}, v{t}")
    p(f"ds_read_b32 v{K2}, v{t+1}")
    ST.t(4)
    p("s_waitcnt lgkmcnt(0)")
    p.label("L2_loop")
    for u in range(UNROLL):
        tile(p, u, 9)
    for r in (V_VA0, V_KA, V_K2A, V_VA1):
        p(f"v_add_u32 v{r}, {UNROLL*KVT}, v{r}")
    p(f"s_add_u32 s{S_CNT}, s{S_CNT}, 1")
    p(f"s_cmp_le_u32 s{S_CNT}, 4")
    p("s_cbranch_scc1 L2_edge")
    p(f"s_cmp_lt_u32 s{S_CNT}, {64//UNROLL-1}")
    p("s_cbranch_scc1 L2_loop")
    for u in range(UNROLL):
        tile(p, u, UNROLL - 1 - u)
    s = SS[1]
    p(mf(OO, V0, PP, OO))
    p(f"v_cvt_pk_bf16_f32 v{PP+6}, v{s+12}, v{s+13}")
    p(f"v_cvt_pk_bf16_f32 v{PP+7}, v{s+14}, v{s+15}")
    p(mf(OO, V1, PP + 4, OO))
    ST.t(6)

    p(f"v_max3_f32 v{t}, |v{OO}|, |v{OO+1}|, |v{OO+2}|")
    for k in range(3, 13, 2):
        p(f"v_max3_f32 v{t}, v{t}, |v{OO+k}|, |v{OO+k+1}|")
    acc_nan = t + 1
    p(f"v_add_f32 v{acc_nan}, v{OO}, v{OO+1}")
    for k in range(2, 13):
        p(f"v_add_f32 v{acc_nan}, v{acc_nan}, v{OO+k}")
    p(f"v_mov_b32 v{t+2}, 0x7b000000")
    p(f"v_cmp_nlt_f32 vcc, v{t}, v{t+2}")
    p(f"v_cmp_u_f32 s[22:23], v{acc_nan}, v{acc_nan}")
    p("s_nop 1")
    p("s_or_b64 vcc, vcc, s[22:23]")
    p("s_cmp_lg_u64 vcc, 0")
    p("s_cbranch_scc1 L2_slow")

    p.label("L2_out")
    p(f"v_rcp_f32 v{t}, v{OO+12}")
    p(f"v_lshlrev_b32 v{t+2}, 4, v{V_LANE}")
    p("s_waitcnt vmcnt(0)")
    p(f"v_mul_f32 v{t}, v{t}, v{V_GATE}")
    p(f"v_mov_b32 v{t+1}, v{t}")
    for k in range(0, 12, 2):
        p(f"v_pk_mul_f32 {vr(OO+k,2)}, {vr(OO+k,2)}, {vr(t,2)}")
    for j in range(6):
        p(f"v_cvt_pk_bf16_f32 v{OO+j}, v{OO+2*j}, v{OO+2*j+1}")
    p(f"s_mul_i32 s{S_T0}, s{S_QT}, 40")
    p(f"s_add_u32 s{S_T1}, s{S_T0}, s{S_HEAD}")
    p(f"s_lshl_b32 s{S_T1}, s{S_T1}, 10")
    p(f"s_add_u32 s{S_T1}, s{S_T1}, {OOFF}")
    p(f"buffer_store_dwordx4 {vr(OO,4)}, v{t+2}, {ws}, s{S_T1} offen")
    p(f"s_lshr_b32 s{S_T1}, s{S_HEAD}, 2")
    p(f"s_add_u32 s{S_T0}, s{S_T0}, s{S_T1}")
    p(f"s_add_u32 s{S_T0}, s{S_T0}, 32")
    p(f"s_lshl_b32 s{S_T0}, s{S_T0}, 10")
    p(f"s_bfe_u32 s{S_T1}, s{S_HEAD}, 0x10001")
    p(f"s_lshl_b32 s{S_T1}, s{S_T1}, 9")
    p(f"s_add_u32 s{S_T0}, s{S_T0}, s{S_T1}")
    p(f"s_and_b32 s{S_T1}, s{S_HEAD}, 1")
    p(f"s_lshl_b32 s{S_T1}, s{S_T1}, 3")
    p(f"s_add_u32 s{S_T0}, s{S_T0}, s{S_T1}")
    p(f"s_add_u32 s{S_T0}, s{S_T0}, {OOFF}")
    p("s_mov_b32 exec_hi, 0")
    p(f"buffer_store_dwordx2 {vr(OO+4,2)}, v{t+2}, {ws}, s{S_T0} offen")
    ST.flush(9, SRD_WS, S_WAVE, 2)
    p("s_endpgm")

    p.label("L2_edge")
    p(f"s_cmp_eq_u32 s{S_CNT}, 3")
    p("s_cbranch_scc1 L2_loop")
    p(f"s_cmp_eq_u32 s{S_CNT}, 4")
    p("s_cbranch_scc1 L2_release")
    p(f"s_lshl_b32 s{S_T1}, s{S_CNT}, 2")
    p(f"v_add_u32 v{V_CA}, s{S_T1}, v{V_CA}")
    poll(p, 0, 4, t)
    p(f"v_mov_b32 v{V_CA}, {CNT}")
    p("s_branch L2_loop")
    p.label("L2_release")
    p("s_waitcnt lgkmcnt(0)")
    signal(p, 12)
    ST.t(5)
    p("s_waitcnt lgkmcnt(0)")
    p("s_branch L2_loop")

    p.label("L2_slow")
    p("s_waitcnt vmcnt(0)")
    lane_offsets(p, 0, 1280)
    p(f"v_mov_b32 v{Q2+1}, 0")
    mx = t + 5
    p(f"v_mov_b32 v{mx}, 0xff800000")
    p(f"s_mov_b32 s{S_CNT}, 0")
    p(f"s_mov_b32 s{S_SRC}, s{S_KV}")
    p.label("L2_maxloop")
    p(f"buffer_load_dwordx4 {vr(K1,4)}, v{V_KA}, {ws}, s{S_SRC} offen")
    p(f"buffer_load_dword v{K2}, v{V_K2A}, {ws}, s{S_SRC} offen")
    p("s_waitcnt vmcnt(0)")
    p(mf(SS[0], K1, Q1, None))
    p(mf8(SS[0], K2, Q2))
    max16(p, mx, SS[0], False)
    p(f"s_add_u32 s{S_SRC}, s{S_SRC}, {KVT}")
    p(f"s_add_u32 s{S_CNT}, s{S_CNT}, 1")
    p(f"s_cmp_lt_u32 s{S_CNT}, 64")
    p("s_cbranch_scc1 L2_maxloop")
    set_shift(p, mx)
    for i in range(16):
        p(f"v_mov_b32 v{OO+i}, 0")
    p(f"s_mov_b32 s{S_CNT}, 0")
    p(f"s_mov_b32 s{S_SRC}, s{S_KV}")
    p.label("L2_slowloop")
    p(f"buffer_load_dwordx4 {vr(K1,4)}, v{V_KA}, {ws}, s{S_SRC} offen")
    p(f"buffer_load_dword v{K2}, v{V_K2A}, {ws}, s{S_SRC} offen")
    p(f"buffer_load_dwordx4 {vr(V0,4)}, v{V_VA0}, {ws}, s{S_SRC} offen")
    p(f"buffer_load_dwordx4 {vr(V1,4)}, v{V_VA1}, {ws}, s{S_SRC} offen")
    p("s_waitcnt vmcnt(0)")
    p(mf(SS[0], K1, Q1, None))
    p(mf8(SS[0], K2, Q2))
    for i in range(16):
        p(f"v_exp_f32 v{SS[0]+i}, v{SS[0]+i}")
    for j in range(8):
        p(f"v_cvt_pk_bf16_f32 v{PP+j}, v{SS[0]+2*j}, v{SS[0]+2*j+1}")
    p(mf(OO, V0, PP, OO))
    p(mf(OO, V1, PP + 4, OO))
    p(f"s_add_u32 s{S_SRC}, s{S_SRC}, {KVT}")
    p(f"s_add_u32 s{S_CNT}, s{S_CNT}, 1")
    p(f"s_cmp_lt_u32 s{S_CNT}, 64")
    p("s_cbranch_scc1 L2_slowloop")
    p("s_nop 7")
    p("s_nop 7")
    p("s_branch L2_out")


G_OA, G_OW, G_G = 2, 3, 8
G_T = 10


def gemm(p, ST):
    ws = sr(SRD_WS, 4)
    acc0, buf0 = 16, 96
    ca, one = 14, 15
    global V_CA, V_ONE
    keep = (V_CA, V_ONE)
    V_CA, V_ONE = ca, one
    t = G_T
    W = S_QT
    p("s_setprio 3")
    p(f"s_sub_u32 s{W}, s{S_WAVE}, 8")
    p(f"v_lshlrev_b32 v{G_OA}, 4, v{V_LANE}")
    p(f"v_lshlrev_b32 v{t}, 2, v{V_LANE}")
    p(f"v_add_u32 v{t}, {CNT}, v{t}")
    p(f"v_mov_b32 v{t+1}, 0")
    p(f"ds_write_b32 v{t}, v{t+1}")
    p(f"s_lshl_b32 s{S_T2}, s{W}, 10")
    p(f"s_add_u32 s{S_SRC}, s{S_KV}, s{S_T2}")
    p(f"s_add_u32 s{S_SRC}, s{S_SRC}, 1280")

    def dma(i):
        p(f"s_add_u32 m0, s{S_T2}, {i*4096}")
        p(f"s_add_u32 s{S_T0}, s{S_SRC}, {i*4096}")
        if i == 39:
            p(f"s_cmp_eq_u32 s{W}, 3")
            p("s_cselect_b32 exec_hi, 0xffff, -1")
        p(f"buffer_load_dwordx4 v{G_OA}, {ws}, s{S_T0} offen lds")
        if i == 39:
            p("s_mov_b32 exec_hi, -1")

    for i in range(0, 6): dma(i)
    p("s_waitcnt lgkmcnt(0)")
    p("s_barrier")
    for i in range(6, 16): dma(i)
    p(f"v_mov_b32 v{ca}, {CNT}")
    p(f"v_mov_b32 v{one}, 1")
    ST.t(2)
    p("s_waitcnt vmcnt(10)")
    signal(p, 0)
    ST.t(3)
    for i in range(16, 28): dma(i)
    p("s_waitcnt vmcnt(17)")
    signal(p, 4)
    for i in range(28, 40): dma(i)
    p(f"s_and_b32 s{S_T0}, s2, 7")
    p(f"s_lshr_b32 s{S_T1}, s2, 3")
    p(f"s_lshr_b32 s{S_MT}, s{S_T0}, 1")
    p(f"s_lshl_b32 s{S_MT}, s{S_MT}, 4")
    p(f"s_lshr_b32 s{S_T2}, s{S_T1}, 1")
    p(f"s_add_u32 s{S_MT}, s{S_MT}, s{S_T2}")
    p(f"s_and_b32 s{S_NG}, s{S_T0}, 1")
    p(f"s_lshl_b32 s{S_NG}, s{S_NG}, 1")
    p(f"s_and_b32 s{S_T2}, s{S_T1}, 1")
    p(f"s_add_u32 s{S_NG}, s{S_NG}, s{S_T2}")
    p(f"s_lshl_b32 s{S_T0}, s{W}, 3")
    p(f"v_add_u32 v{t}, s{S_T0}, v{V_LANE}")
    p(f"v_and_b32 v{t}, 31, v{t}")
    p(f"v_and_b32 v{t+1}, 32, v{V_LANE}")
    p(f"v_or_b32 v{t}, v{t}, v{t+1}")
    p(f"v_lshlrev_b32 v{t}, 4, v{t}")
    for nt in range(5):
        p(f"v_add_u32 v{G_OW+nt}, {nt*136*1024}, v{t}")
    p(f"s_mul_i32 s{S_T2}, s{W}, {24*1024}")
    p(f"s_mul_i32 s{S_SA}, s{S_MT}, {96*1024}")
    p(f"s_add_u32 s{S_SA}, s{S_SA}, s{S_T2}")
    p(f"s_add_u32 s{S_SA}, s{S_SA}, {HOFF}")
    p(f"s_mul_i32 s{S_SW}, s{S_NG}, {5*136*1024}")
    p(f"s_add_u32 s{S_SW}, s{S_SW}, s{S_T2}")
    p(f"s_add_u32 s{S_SW}, s{S_SW}, {WFOFF+40*1024}")
    p(f"v_and_b32 v{t}, 31, v{V_LANE}")
    p(f"v_lshlrev_b32 v{t}, 2, v{t}")
    p(f"s_lshl_b32 s{S_T0}, s{S_MT}, 7")
    p(f"s_add_u32 s{S_T0}, s{S_T0}, {GOFF}")
    p(f"buffer_load_dword v{G_G}, v{t}, {ws}, s{S_T0} offen")

    def loads(u):
        b = buf0 + 24 * u
        p(f"buffer_load_dwordx4 {vr(b,4)}, v{G_OA}, {ws}, s{S_SA} offen offset:{1024*u}")
        for nt in range(5):
            p(f"buffer_load_dwordx4 {vr(b+4+4*nt,4)}, v{G_OW+nt}, {ws}, s{S_SW} offen offset:{1024*u}")

    def mfmas(u):
        b = buf0 + 24 * u
        for nt in range(5):
            p(mf(acc0 + 16 * nt, b + 4 + 4 * nt, b, acc0 + 16 * nt))

    for u in range(3):
        loads(u)
    for i in range(80):
        p(f"v_mov_b32 v{acc0+i}, 0")
    p("s_waitcnt vmcnt(19)")
    signal(p, 8)
    ST.t(4)
    p(f"s_mov_b32 s{S_CNT}, 7")
    p.label("L2_gloop")
    p(f"s_add_u32 s{S_SA}, s{S_SA}, 3072")
    p(f"s_add_u32 s{S_SW}, s{S_SW}, 3072")
    for u in range(3):
        p("s_waitcnt vmcnt(12)")
        mfmas(u)
        loads(u)
    p(f"s_sub_u32 s{S_CNT}, s{S_CNT}, 1")
    p(f"s_cmp_lg_u32 s{S_CNT}, 0")
    p("s_cbranch_scc1 L2_gloop")
    for u in range(3):
        p(f"s_waitcnt vmcnt({12-6*u})")
        mfmas(u)
    ST.t(5)
    for r in range(1, 4):
        p(f"s_add_u32 s{S_T0}, s{W}, {r}")
        p(f"s_and_b32 s{S_T0}, s{S_T0}, 3")
        p(f"s_mul_i32 s{S_T0}, s{S_T0}, 15360")
        p(f"v_add_u32 v{G_OW+r}, s{S_T0}, v{G_OA}")
    p(f"s_mul_i32 s{S_T0}, s{W}, 15360")
    p(f"v_add_u32 v{G_OW}, s{S_T0}, v{G_OA}")
    p(f"v_sub_f32 v{G_G}, 1.0, v{G_G}")
    p(f"v_mov_b32 v{G_G+1}, v{G_G}")
    poll(p, 12, 8, t)
    for nt in range(5):
        for r in range(1, 4):
            p(f"ds_write_b128 v{G_OW+r}, {vr(acc0+16*nt+4*r,4)} offset:{((r-1)*5+nt)*1024}")
    p("s_waitcnt lgkmcnt(0)")
    signal(p, 16)
    poll(p, 16, 4, t)
    ST.t(6)
    for nt in range(5):
        for r in range(1, 4):
            p(f"ds_read_b128 {vr(acc0+16*nt+4*r,4)}, v{G_OW} offset:{((r-1)*5+nt)*1024}")
    p(f"s_mul_i32 s{S_T0}, s{S_MT}, {160*512}")
    p(f"s_mul_i32 s{S_T1}, s{S_NG}, {40*512}")
    p(f"s_add_u32 s{S_T0}, s{S_T0}, s{S_T1}")
    p(f"s_lshl_b32 s{S_T1}, s{W}, 10")
    p(f"s_add_u32 s{S_T0}, s{S_T0}, s{S_T1}")
    p(f"s_add_u32 s{S_T0}, s{S_T0}, {BOFF}")
    for nt in range(5):
        a = acc0 + 16 * nt
        p(f"s_waitcnt lgkmcnt({0 if DIAG else 3*(4-nt)})")
        for h in range(2):
            p(f"v_pk_add_f32 {vr(a+2*h,2)}, {vr(a+2*h,2)}, {vr(a+4+2*h,2)}")
            p(f"v_pk_add_f32 {vr(a+8+2*h,2)}, {vr(a+8+2*h,2)}, {vr(a+12+2*h,2)}")
        for h in range(2):
            p(f"v_pk_add_f32 {vr(a+2*h,2)}, {vr(a+2*h,2)}, {vr(a+8+2*h,2)}")
        for h in range(2):
            p(f"v_pk_mul_f32 {vr(a+2*h,2)}, {vr(a+2*h,2)}, {vr(G_G,2)}")
        p(f"buffer_store_dwordx4 {vr(a,4)}, v{G_OA}, {ws}, s{S_T0} offen sc1")
        p(f"s_add_u32 s{S_T0}, s{S_T0}, 4096")
    ST.flush(9, SRD_WS, S_WAVE, 2)
    V_CA, V_ONE = keep


def build():
    p = Prog()
    p.label(LABEL)
    p("s_cmp_ge_u32 s2, 256")
    p("s_cbranch_scc1 L2_end")
    ST = Stamps(p, 1)
    ST.t(0, True); ST.t(1)
    p("s_load_dwordx2 s[4:5], s[0:1], 72")
    p(f"v_and_b32 v{V_LANE}, 63, v0")
    p(f"v_lshrrev_b32 v{V_T}, 6, v0")
    p(f"v_readfirstlane_b32 s{S_WAVE}, v{V_T}")
    p(f"s_and_b32 s{S_T0}, s2, 7")
    p(f"s_lshr_b32 s{S_T1}, s2, 3")
    p(f"s_lshl_b32 s{S_HEAD}, s{S_T0}, 2")
    p(f"s_lshr_b32 s{S_T2}, s{S_T1}, 3")
    p(f"s_add_u32 s{S_HEAD}, s{S_HEAD}, s{S_T2}")
    p(f"s_and_b32 s{S_QT}, s{S_T1}, 7")
    p(f"s_lshl_b32 s{S_QT}, s{S_QT}, 3")
    p(f"s_add_u32 s{S_QT}, s{S_QT}, s{S_WAVE}")
    p(f"s_mul_i32 s{S_KV}, s{S_HEAD}, {KVH}")
    p(f"s_add_u32 s{S_KV}, s{S_KV}, {KVOFF}")
    p(f"v_mov_b32 v{V_CA}, {CNT}")
    p(f"v_mov_b32 v{V_ONE}, 1")
    p("s_waitcnt lgkmcnt(0)")
    srd(p, SRD_WS, 4, WS_BYTES)
    p(f"s_cmp_ge_u32 s{S_WAVE}, 8")
    p("s_cbranch_scc1 L2_gemm")
    attention(p, ST)
    p.label("L2_gemm")
    gemm(p, ST)
    p.label("L2_end")
    p("s_endpgm")
    return header(LABEL) + p.finish(name="k2"), descriptor(LABEL, NV, 102 if DIAG else 40)
```

```python
from common import *

LABEL = "gm_out_kernel"
LDS = 61440

SRD_WS, SRD_OUT = 8, 12
S_WAVE, S_RB, S_CB, S_T0, S_T1, S_T2 = 16, 17, 18, 19, 20, 21
S_SO, S_SW, S_SB = 22, 28, 34
V_LANE, V_L, V_AO, V_AW, V_T = 1, 2, 3, 7, 12
ACC = 20
OF = 100
NVV = 180
NA = 100


def build():
    p = Prog()
    p.label(LABEL)
    p("s_cmp_ge_u32 s2, 256")
    p("s_cbranch_scc1 L3_end")
    ST = Stamps(p, 2)
    ST.t(0, True); ST.t(1)
    p("s_load_dwordx2 s[4:5], s[0:1], 72")
    p("s_load_dwordx2 s[6:7], s[0:1], 56")
    p(f"v_and_b32 v{V_LANE}, 63, v0")
    p(f"v_lshrrev_b32 v{V_T}, 6, v0")
    p(f"v_readfirstlane_b32 s{S_WAVE}, v{V_T}")
    p(f"s_and_b32 s{S_T0}, s2, 7")
    p(f"s_lshr_b32 s{S_T1}, s2, 3")
    p(f"s_lshr_b32 s{S_RB}, s{S_T0}, 1")
    p(f"s_lshl_b32 s{S_RB}, s{S_RB}, 3")
    p(f"s_lshr_b32 s{S_T2}, s{S_T1}, 2")
    p(f"s_add_u32 s{S_RB}, s{S_RB}, s{S_T2}")
    p(f"s_and_b32 s{S_CB}, s{S_T0}, 1")
    p(f"s_lshl_b32 s{S_CB}, s{S_CB}, 2")
    p(f"s_and_b32 s{S_T2}, s{S_T1}, 3")
    p(f"s_add_u32 s{S_CB}, s{S_CB}, s{S_T2}")
    t = V_T
    p(f"v_and_b32 v{t}, 15, v{V_LANE}")
    p(f"v_lshrrev_b32 v{t+1}, 4, v{V_LANE}")
    p(f"v_lshlrev_b32 v{V_L}, 4, v{t}")
    p(f"v_lshl_add_u32 v{V_L}, v{t+1}, 9, v{V_L}")
    for s in range(4):
        p(f"s_add_u32 s{S_T0}, s{S_WAVE}, {s}")
        p(f"s_bfe_u32 s{S_T1}, s{S_T0}, 0x10001")
        p(f"s_mul_i32 s{S_T1}, s{S_T1}, 40960")
        p(f"s_and_b32 s{S_T0}, s{S_T0}, 1")
        p(f"s_lshl_b32 s{S_T0}, s{S_T0}, 8")
        p(f"s_add_u32 s{S_T0}, s{S_T0}, s{S_T1}")
        p(f"v_add_u32 v{V_AO+s}, s{S_T0}, v{V_L}")
    p(f"s_mul_i32 s{S_T2}, s{S_CB}, 5")
    for j in range(5):
        p(f"s_add_u32 s{S_T0}, s{S_T2}, {j}")
        p(f"s_lshr_b32 s{S_T1}, s{S_T0}, 1")
        p(f"s_mul_i32 s{S_T1}, s{S_T1}, {136*1024}")
        p(f"s_and_b32 s{S_T0}, s{S_T0}, 1")
        p(f"s_lshl_b32 s{S_T0}, s{S_T0}, 8")
        p(f"s_add_u32 s{S_T0}, s{S_T0}, s{S_T1}")
        p(f"v_add_u32 v{V_AW+j}, s{S_T0}, v{V_L}")
    p(f"s_mul_i32 s{S_T0}, s{S_WAVE}, 10240")
    p(f"s_mul_i32 s{S_T1}, s{S_RB}, 81920")
    p(f"s_add_u32 s{S_T1}, s{S_T1}, s{S_T0}")
    for k in range(5):
        p(f"s_add_u32 s{S_SO+k}, s{S_T1}, {OOFF+2048*k}")
        p(f"s_add_u32 s{S_SW+k}, s{S_T0}, {WFOFF+2048*k}")
    p(f"s_lshl_b32 s{S_T0}, s{S_RB}, 1")
    p(f"s_lshr_b32 s{S_T1}, s{S_WAVE}, 1")
    p(f"s_add_u32 s{S_T0}, s{S_T0}, s{S_T1}")
    p(f"s_mul_i32 s{S_T0}, s{S_T0}, 81920")
    p(f"s_mul_i32 s{S_T1}, s{S_CB}, 10240")
    p(f"s_add_u32 s{S_T0}, s{S_T0}, s{S_T1}")
    p(f"s_and_b32 s{S_T1}, s{S_WAVE}, 1")
    p(f"s_lshl_b32 s{S_T1}, s{S_T1}, 8")
    p(f"s_add_u32 s{S_T0}, s{S_T0}, s{S_T1}")
    p(f"s_add_u32 s{S_SB}, s{S_T0}, {BOFF}")
    p(f"s_add_u32 s{S_SB+1}, s{S_T0}, {BOFF+4096}")
    p(f"s_add_u32 s{S_SB+2}, s{S_T0}, {BOFF+8192}")
    p("s_waitcnt lgkmcnt(0)")
    srd(p, SRD_WS, 4, WS_BYTES)
    srd(p, SRD_OUT, 6, 2048 * 1280)
    ws = sr(SRD_WS, 4)
    acc = lambda s, j: ACC + 4 * (5 * s + j)
    of = lambda k, s: OF + 4 * (4 * k + s)
    wf = lambda k, j: f"a[{4*(5*k+j)}:{4*(5*k+j)+3}]"
    for k in range(5):
        for j in range(5):
            p(f"buffer_load_dwordx4 {wf(k,j)}, v{V_AW+j}, {ws}, s{S_SW+k} offen")
        for s in (1, 2, 3, 0):
            p(f"buffer_load_dwordx4 {vr(of(k,s),4)}, v{V_AO+s}, {ws}, s{S_SO+k} offen")
        if k == 0:
            for j in range(5):
                p(f"buffer_load_dwordx4 {vr(acc(0,j),4)}, v{V_L}, {ws}, s{S_SB+j//2} offen offset:{2048*(j&1)}")
    ST.t(2)
    AD = V_AO
    p(f"v_lshlrev_b32 v{t+2}, 4, v{V_LANE}")
    RA = t + 3
    for s in range(4):
        p(f"s_add_u32 s{S_T0}, s{S_WAVE}, {s}")
        p(f"s_and_b32 s{S_T0}, s{S_T0}, 3")
        p(f"s_mul_i32 s{S_T0}, s{S_T0}, 15360")
        p(f"v_add_u32 v{RA+s}, s{S_T0}, v{t+2}")
    p(f"v_mul_u32_u24 v{t}, 1280, v{t}")
    p(f"v_lshl_add_u32 v{t}, v{t+1}, 3, v{t}")
    p(f"s_lshl_b32 s{S_T0}, s{S_RB}, 2")
    p(f"s_add_u32 s{S_T0}, s{S_T0}, s{S_WAVE}")
    p(f"s_mul_i32 s{S_T0}, s{S_T0}, {16*1280}")
    p(f"s_mul_i32 s{S_T1}, s{S_CB}, 160")
    p(f"s_add_u32 s{S_T2}, s{S_T0}, s{S_T1}")
    total = 50
    done = 0
    for k in range(5):
        done += 5
        for s in (1, 2, 3, 0):
            done += 1
            if k == 0 and s == 0:
                done += 5
            p(f"s_waitcnt vmcnt({total-done})")
            if k == 0 and s == 1: ST.t(3)
            for j in range(5):
                c = "0" if (k == 0 and s != 0) else vr(acc(s, j), 4)
                p(f"v_mfma_f32_16x16x32_bf16 {vr(acc(s,j),4)}, {wf(k,j)}, {vr(of(k,s),4)}, {c}")
            if k == 4 and s in (2, 3, 0):
                sp = (s - 1) % 4
                for j in range(5):
                    p(f"ds_write_b128 v{RA+sp}, {vr(acc(sp,j),4)} offset:{((sp-1)*5+j)*1024}")
    ST.t(4)
    p("s_waitcnt lgkmcnt(0)")
    p("s_barrier")
    ST.t(5)
    for j in range(5):
        for s in range(1, 4):
            p(f"ds_read_b128 {vr(acc(s,j),4)}, v{RA} offset:{((s-1)*5+j)*1024}")
    for j in range(5):
        a, b, c, d = (acc(s, j) for s in range(4))
        p(f"s_waitcnt lgkmcnt({0 if DIAG else 3*(4-j)})")
        for h in (0, 2):
            p(f"v_pk_add_f32 {vr(a+h,2)}, {vr(a+h,2)}, {vr(b+h,2)}")
            p(f"v_pk_add_f32 {vr(c+h,2)}, {vr(c+h,2)}, {vr(d+h,2)}")
        for h in (0, 2):
            p(f"v_pk_add_f32 {vr(a+h,2)}, {vr(a+h,2)}, {vr(c+h,2)}")
        p(f"v_cvt_pk_bf16_f32 v{a}, v{a}, v{a+1}")
        p(f"v_cvt_pk_bf16_f32 v{a+1}, v{a+2}, v{a+3}")
        p(f"buffer_store_dwordx2 {vr(a,2)}, v{t}, {sr(SRD_OUT,4)}, s{S_T2} offen offset:{32*j}")
    ST.t(6)
    ST.flush(9, SRD_WS, S_WAVE, 2)
    p.label("L3_end")
    p("s_endpgm")
    return header(LABEL) + p.finish(name="k3"), descriptor(LABEL, NVV + NA, 102 if DIAG else 40, NVV)
```

```python
import sys, os
sys.path.insert(0, os.path.dirname(os.path.abspath(__file__)))
from common import *
import k1b as k1, k2b as k2, k3b as k3

HEAD = """; Kernarg layout for this problem (80 bytes, ptrs only, base s[0:1]):
"""


def main(out):
    ks = [(k1, 256), (k2, 512), (k3, 256)]
    s = HEAD
    for k, blk in ks:
        blk = getattr(k, "BLOCK", blk)
        grid = getattr(k, "GRID", 256)
        s += f"; @launch kernel={k.LABEL} grid=({grid},1,1) block=({blk},1,1) lds={k.LDS}\n"
    s += '.amdgcn_target "amdgcn-amd-amdhsa--gfx950"\n.text\n'
    descs = ""
    for k, _ in ks:
        c, d = k.build()
        s += c
        descs += d
    s += '.section .rodata,"a"\n' + descs
    open(out, "w").write(s)
    print("wrote", out, len(s))


if __name__ == "__main__":
    main(sys.argv[1] if len(sys.argv) > 1 else f"cdna_kernels/{NAME}.s")
```

```python
from common import *
import struct

LABEL = "gm_proj_kernel"
BLOCK = 512
STAGE = 45056
WQ, WH = 16384, 32768
RL = 3 * STAGE
GW = RL + 16384
CNT = GW + 1280
LDS = CNT + 256
SC1 = " sc1" if int(os.environ.get("K1SC1", "1")) else ""
PFD = int(os.environ.get("PFD", "8"))

SRD_X, SRD_WQ, SRD_WH, SRD_WS, SRD_T = 24, 28, 32, 36, 40
S_WAVE, S_RB, S_CG, S_T0, S_T1, S_T2, S_T3, S_SPIN, S_CNT = 44, 45, 46, 47, 48, 49, 50, 51, 52
S_WR, S_WRH, S_SX, S_SQ, S_SH, S_SLOT = 53, 54, 55, 56, 57, 58
S_E = 60

V_LANE, V_CA, V_ONE, V_F = 1, 2, 3, 4
V_T = 5


def f32bits(x):
    return struct.unpack("<I", struct.pack("<f", x))[0]


_uid = [0]


def poll(p, off, nap):
    _uid[0] += 1
    n = _uid[0]
    p(f"s_mov_b32 s{S_SPIN}, 0x40000")
    p.label(f"L1_poll{n}")
    p(f"ds_read_b32 v{V_F}, v{V_CA} offset:{off}")
    p("s_waitcnt lgkmcnt(0)")
    p(f"v_readfirstlane_b32 s{S_T0}, v{V_F}")
    p(f"s_cmp_eq_u32 s{S_T0}, 4")
    p(f"s_cbranch_scc1 L1_got{n}")
    if nap:
        p(f"s_sleep {nap}")
    p(f"s_sub_u32 s{S_SPIN}, s{S_SPIN}, 1")
    p(f"s_cmp_lg_u32 s{S_SPIN}, 0")
    p(f"s_cbranch_scc1 L1_poll{n}")
    p.label(f"L1_got{n}")


def signal(off):
    return (f"s_mov_b64 exec, 1\n"
            f"ds_add_u32 v{V_CA}, v{V_ONE} offset:{off}\n"
            f"s_mov_b64 exec, -1")


L_OX, L_OQ, L_OH = 12, 13, 14
L_D = 20


def dma_groups():
    g = []
    for jj in range(4):
        g.append(f"s_add_u32 m0, s{S_WR}, {jj*4096}\n"
                 f"s_add_u32 s{S_T0}, s{S_SX}, {jj*40960}\n"
                 f"buffer_load_dwordx4 v{L_OX}, {sr(SRD_X,4)}, s{S_T0} offen lds")
    for i in range(3):
        g.append(f"s_add_u32 m0, s{S_WRH}, {WH+i*1024}\n"
                 f"s_nop 0\n"
                 f"buffer_load_dwordx4 v{L_OH+i}, {sr(SRD_WH,4)}, s{S_SH} offen lds")
    for jj in range(4):
        g.append(f"s_add_u32 m0, s{S_WR}, {WQ+jj*4096}\n"
                 f"s_add_u32 s{S_T0}, s{S_SQ}, {jj*16*3840}\n"
                 f"buffer_load_dwordx4 v{L_OQ}, {sr(SRD_WQ,4)}, s{S_T0} offen lds")
    return g


def advance(p):
    p(f"s_add_u32 s{S_SX}, s{S_SX}, 128")
    p(f"s_add_u32 s{S_SQ}, s{S_SQ}, {64*3840}")
    p(f"s_add_u32 s{S_SH}, s{S_SH}, {64*3072}")
    p(f"s_cmp_ge_u32 s{S_WR}, {2*STAGE}")
    ssel(p, S_T1, -2 * STAGE, STAGE)
    p(f"s_add_u32 s{S_WR}, s{S_WR}, s{S_T1}")
    p(f"s_add_u32 s{S_WRH}, s{S_WRH}, s{S_T1}")


def relayout_issue(p, f):
    u, ks, np_, t1, t2, hm, dd = (S_E + i for i in range(7))
    dst = S_E + 8 + f
    t = V_T
    p(f"s_mul_i32 s{ks}, s{u}, 6554")
    p(f"s_lshr_b32 s{ks}, s{ks}, 16")
    p(f"s_mul_i32 s{t1}, s{ks}, 10")
    p(f"s_sub_u32 s{np_}, s{u}, s{t1}")
    p(f"s_mul_i32 s{t2}, s{np_}, 272")
    p(f"s_add_u32 s{t2}, s{t2}, s{ks}")
    p(f"s_lshl_b32 s{t2}, s{t2}, 10")
    p(f"s_add_u32 s{dst}, s{t2}, {WFOFF}")
    p(f"s_mul_i32 s{t1}, s{ks}, 20")
    p(f"s_sub_u32 s{t2}, s{ks}, 32")
    p(f"s_mul_i32 s{t2}, s{t2}, 80")
    p(f"s_add_u32 s{t2}, s{t2}, 16")
    p(f"s_cmp_lt_u32 s{ks}, 32")
    p(f"s_cselect_b32 s{t1}, s{t1}, s{t2}")
    ssel(p, hm, 4 * 1280, 40 * 1280)
    ssel(p, dd, 8 * 1280, 20 * 1280)
    p(f"s_sub_u32 s{t2}, s{ks}, 40")
    p(f"s_lshl_b32 s{t2}, s{t2}, 4")
    p(f"s_cmp_lt_u32 s{ks}, 40")
    p(f"s_cselect_b32 s{t1}, s{t1}, s{t2}")
    p(f"s_cselect_b32 s{hm}, s{hm}, {8*1280}")
    p(f"s_cselect_b32 s{dd}, s{dd}, {4*1280}")
    p(f"s_cselect_b32 s{SRD_T}, s8, s14")
    p(f"s_cselect_b32 s{SRD_T+1}, s9, s15")
    ssel(p, SRD_T + 2, 640 * 1280, 1536 * 1280)
    p(f"s_mov_b32 s{SRD_T+3}, 0x00020000")
    p(f"s_mul_i32 s{t1}, s{t1}, 1280")
    p(f"s_lshl_b32 s{t2}, s{np_}, 7")
    p(f"s_add_u32 s{t1}, s{t1}, s{t2}")
    p(f"s_add_u32 s{t2}, s{t1}, s{hm}")
    p(f"v_lshrrev_b32 v{t}, 5, v{V_LANE}")
    p(f"v_bfe_u32 v{t+1}, v{V_LANE}, 3, 2")
    p(f"v_mul_u32_u24 v{t+1}, 1280, v{t+1}")
    p(f"v_mad_u32_u24 v{t}, v{t}, s{dd}, v{t+1}")
    p(f"v_and_b32 v{t+1}, 7, v{V_LANE}")
    p(f"v_lshl_add_u32 v{t}, v{t+1}, 4, v{t}")
    p(f"s_lshl_b32 s{hm}, s{S_WAVE}, 12")
    for hf, so in ((0, t1), (1, t2)):
        p(f"s_add_u32 m0, s{hm}, {RL+f*2048+hf*1024}")
        p("s_nop 0")
        p(f"buffer_load_dwordx4 v{t}, {sr(SRD_T,4)}, s{so} offen lds")


def relayout_store(p, f):
    dst = S_E + 8 + f
    a, o = V_T + 2, V_T + 3
    for nt in range(2):
        for h in range(2):
            p(f"ds_read_b64_tr_b16 {vr(L_D+8*f+4*nt+2*h,2)}, v{a} offset:{f*2048+h*512+nt*64}")
    p(f"s_add_u32 s{S_T0}, s{dst}, {136*1024}")
    p("s_waitcnt lgkmcnt(0)")
    p(f"buffer_store_dwordx4 {vr(L_D+8*f,4)}, v{o}, {sr(SRD_WS,4)}, s{dst} offen{SC1}")
    p(f"buffer_store_dwordx4 {vr(L_D+8*f+4,4)}, v{o}, {sr(SRD_WS,4)}, s{S_T0} offen{SC1}")


def loader(p, ST):
    t = V_T
    p("s_setprio 3")
    p(f"s_and_b32 s{S_T0}, s{S_WAVE}, 1")
    p(f"s_lshr_b32 s{S_T1}, s{S_WAVE}, 1")
    p(f"s_lshl_b32 s{S_T2}, s{S_T0}, 2")
    p(f"v_lshrrev_b32 v{t}, 4, v{V_LANE}")
    p(f"v_add_u32 v{t+1}, s{S_T2}, v{t}")
    p(f"v_and_b32 v{t+2}, 7, v{V_LANE}")
    p(f"v_xor_b32 v{t+1}, v{t+1}, v{t+2}")
    p(f"v_lshrrev_b32 v{t+2}, 3, v{V_LANE}")
    p(f"v_mul_u32_u24 v{t+2}, 1280, v{t+2}")
    p(f"v_lshl_add_u32 v{L_OX}, v{t+1}, 4, v{t+2}")
    p(f"s_lshl_b32 s{S_SX}, s{S_RB}, 4")
    p(f"s_lshl_b32 s{S_T2}, s{S_T0}, 1")
    p(f"s_add_u32 s{S_SX}, s{S_SX}, s{S_T2}")
    p(f"s_add_u32 s{S_SX}, s{S_SX}, s{S_T1}")
    p(f"s_mul_i32 s{S_SX}, s{S_SX}, {8*1280}")
    p(f"s_lshl_b32 s{S_WR}, s{S_WAVE}, 10")
    p(f"s_mul_i32 s{S_WRH}, s{S_WAVE}, 3072")
    p(f"s_lshl_b32 s{S_T2}, s{S_T1}, 2")
    p(f"v_or_b32 v{t+1}, s{S_T2}, v{t}")
    p(f"v_lshlrev_b32 v{t+1}, 1, v{t+1}")
    p(f"v_and_b32 v{t+2}, 15, v{V_LANE}")
    p(f"v_xor_b32 v{t+1}, v{t+1}, v{t+2}")
    p(f"v_mul_u32_u24 v{t+2}, 3840, v{t}")
    p(f"v_lshl_add_u32 v{L_OQ}, v{t+1}, 4, v{t+2}")
    p(f"s_min_u32 s{S_T2}, s{S_CG}, 14")
    p(f"s_lshl_b32 s{S_T2}, s{S_T2}, 8")
    p(f"s_mul_i32 s{S_SQ}, s{S_WAVE}, {4*3840}")
    p(f"s_add_u32 s{S_SQ}, s{S_SQ}, s{S_T2}")
    for i in range(3):
        p(f"v_add_u32 v{t}, {64*i}, v{V_LANE}")
        p(f"v_mul_u32_u24 v{t+1}, 171, v{t}")
        p(f"v_lshrrev_b32 v{t+1}, 11, v{t+1}")
        p(f"v_mul_u32_u24 v{t+2}, 12, v{t+1}")
        p(f"v_sub_u32 v{t}, v{t}, v{t+2}")
        p(f"v_lshrrev_b32 v{t+2}, 3, v{t+1}")
        p(f"v_lshlrev_b32 v{t+2}, 1, v{t+2}")
        p(f"v_xor_b32 v{t}, v{t}, v{t+2}")
        p(f"v_mul_u32_u24 v{t+1}, 3072, v{t+1}")
        p(f"v_lshl_add_u32 v{L_OH+i}, v{t}, 4, v{t+1}")
    p(f"s_mul_i32 s{S_SH}, s{S_WAVE}, {16*3072}")
    p(f"s_mul_i32 s{S_T2}, s{S_CG}, 192")
    p(f"s_add_u32 s{S_SH}, s{S_SH}, s{S_T2}")
    p("s_waitcnt lgkmcnt(0)")
    srd(p, SRD_X, 4, 2048 * 1280)
    srd(p, SRD_WH, 12, 640 * 3072)
    srd(p, SRD_WQ, 6, 640 * 3840)
    g = dma_groups()
    ST.t(2)
    for x in g: p(x)
    advance(p)
    for x in g: p(x)
    advance(p)
    srd(p, SRD_T, 16, 1280)
    p(f"v_lshlrev_b32 v{t+3}, 4, v{V_LANE}")
    p(f"s_mul_i32 s{S_T0}, s{S_WAVE}, 320")
    p(f"s_add_u32 m0, s{S_T0}, {GW}")
    p("s_mov_b64 exec, 0xfffff")
    p(f"buffer_load_dwordx4 v{t+3}, {sr(SRD_T,4)}, s{S_T0} offen lds")
    p("s_mov_b64 exec, -1")
    ST.t(3)
    p("s_barrier")
    srd(p, SRD_WS, 20, WS_BYTES)
    p(f"v_mov_b32 v{V_CA}, {CNT}")
    p(f"v_mov_b32 v{V_ONE}, 1")
    p("s_waitcnt vmcnt(12)")
    p(signal(0))
    ST.t(4)
    p(f"s_mov_b32 s{S_CNT}, 8")
    p("s_branch L1_fill")
    p.label("L1_lloop")
    poll(p, 64 - 4, 1)
    p.label("L1_fill")
    for x in g[:6]: p(x)
    p("s_waitcnt vmcnt(6)")
    p(signal(4))
    for x in g[6:]: p(x)
    advance(p)
    p(f"v_add_u32 v{V_CA}, 4, v{V_CA}")
    p(f"s_sub_u32 s{S_CNT}, s{S_CNT}, 1")
    p(f"s_cmp_lg_u32 s{S_CNT}, 0")
    p("s_cbranch_scc1 L1_lloop")
    ST.t(5)
    p(f"s_lshl_b32 s{S_E}, s{S_WAVE}, 8")
    p(f"s_add_u32 s{S_E}, s{S_E}, s2")
    relayout_issue(p, 0)
    p("s_waitcnt vmcnt(2)")
    p(signal(4))
    ST.t(6)
    p(f"v_lshrrev_b32 v{t}, 5, v{V_LANE}")
    p(f"v_bfe_u32 v{t+1}, v{V_LANE}, 2, 2")
    p(f"v_lshl_add_u32 v{t}, v{t}, 3, v{t+1}")
    p(f"v_lshlrev_b32 v{t}, 7, v{t}")
    p(f"v_bfe_u32 v{t+1}, v{V_LANE}, 4, 1")
    p(f"v_lshl_add_u32 v{t}, v{t+1}, 5, v{t}")
    p(f"v_and_b32 v{t+1}, 3, v{V_LANE}")
    p(f"v_lshl_add_u32 v{t}, v{t+1}, 3, v{t}")
    p(f"s_lshl_b32 s{S_T0}, s{S_WAVE}, 12")
    p(f"s_add_u32 s{S_T0}, s{S_T0}, {RL}")
    p(f"v_add_u32 v{t+2}, s{S_T0}, v{t}")
    p(f"s_add_u32 s{S_E}, s{S_E}, 1024")
    p(f"s_cmp_ge_u32 s{S_E}, 1360")
    p("s_cbranch_scc1 L1_rl0")
    relayout_issue(p, 1)
    p("s_waitcnt vmcnt(0)")
    relayout_store(p, 1)
    p.label("L1_rl0")
    p("s_waitcnt vmcnt(0)")
    relayout_store(p, 0)
    ST.flush(9, SRD_WS, S_WAVE, 2)
    p("s_endpgm")


C_XA, C_QA, C_HA = 12, 14, 18
C_GA = 21
C_OQ, C_OH = 22, 26
C_K = 28
C_PF = 34
SET = [36, 80]
ACC = 124
NV = 240
X = lambda s, m: SET[s] + 4 * m
FH = lambda s, t: SET[s] + 16 + 4 * t
FQ = lambda s, t: SET[s] + 28 + 4 * t
AH = lambda t, m: ACC + 4 * (4 * t + m)
AQ = lambda t, m: ACC + 48 + 4 * (4 * t + m)


def mf(d, a, b):
    return f"v_mfma_f32_16x16x32_bf16 {vr(d,4)}, {vr(a,4)}, {vr(b,4)}, {vr(d,4)}"


def weave(p, main, extra):
    for i, m in enumerate(main):
        p(m)
        for x in extra.get(i, []):
            p(x)


def path(p, ST, kind):
    nq = 1 if kind == "g" else 4
    mh = lambda s: [mf(AH(t, m), FH(s, t), X(s, m)) for t in range(3) for m in range(4)]
    def mq(s):
        if kind == "v":
            return [mf(AQ(t, m), X(s, m), FQ(s, t)) for t in range(4) for m in range(4)]
        return [mf(AQ(t, m), FQ(s, t), X(s, m)) for t in range(nq) for m in range(4)]
    rx = lambda s, ks: [f"ds_read_b128 {vr(X(s,m),4)}, v{C_XA+ks} offset:{m*2048}" for m in range(4)]
    rh = lambda s, ks: [f"ds_read_b64_tr_b16 {vr(FH(s,t)+2*h,2)}, v{C_HA+t} offset:{WH+ks*6144+h*768}"
                        for t in range(3) for h in range(2)]
    def rq(s, ks):
        if kind == "g":
            return [f"ds_read_b128 {vr(FQ(s,0),4)}, v{C_GA} offset:{ks*64}"]
        return [f"ds_read_b64_tr_b16 {vr(FQ(s,t)+2*h,2)}, v{C_QA+t} offset:{WQ+ks*8192+h*1024}"
                for t in range(4) for h in range(2)]
    def reads(s, ks):
        a, b = rh(s, ks), rx(s, ks)
        return a[:2] + b + a[2:] + rq(s, ks)
    nm = 12 + 4 * nq
    regs = [C_XA, C_XA + 1] + [C_HA + t for t in range(3)] + ([C_QA + t for t in range(4)] if nq == 4 else [])

    poll(p, 0, 0)
    if kind == "g":
        poll(p, 4, 0)
    ST.t(3)
    for x in reads(0, 0): p(x)
    p(f"s_mov_b32 s{S_CNT}, 9")
    p(f"s_mov_b32 s{S_SLOT}, 0")
    p.label(f"L1_{kind}_loop")
    p("s_waitcnt lgkmcnt(0)")
    rd = reads(1, 1)
    ex = {}
    for i, r in enumerate(rd):
        ex.setdefault(i if nq == 4 else i * 2 // 3, []).append(r)
    n0 = max(ex) + 1
    ex.setdefault(n0, []).append(f"s_cmp_eq_u32 s{S_SLOT}, 2\n"
                                 f"s_mov_b32 s{S_T1}, {STAGE}\n"
                                 f"s_cmov_b32 s{S_T1}, {-2*STAGE}\n"
                                 f"s_add_u32 s{S_SLOT}, s{S_SLOT}, 1\n"
                                 f"s_cmp_eq_u32 s{S_SLOT}, 3\n"
                                 f"s_cmov_b32 s{S_SLOT}, 0")
    upd = [f"v_add_u32 v{r}, s{S_T1}, v{r}" for r in regs]
    if kind == "g":
        upd.append(f"v_add_u32 v{C_GA}, 128, v{C_GA}")
    for i, u in enumerate(upd):
        ex.setdefault(n0 + i // 2, []).append(u)
    ex.setdefault(nm - 5, []).append("s_waitcnt lgkmcnt(0)\n" + signal(64))
    ex.setdefault(nm - 5, []).append(f"ds_read_b32 v{V_F}, v{V_CA} offset:4")
    weave(p, mh(0) + mq(0), ex)
    p("s_waitcnt lgkmcnt(0)")
    p(f"v_readfirstlane_b32 s{S_T0}, v{V_F}")
    m1 = mh(1) + mq(1)
    p(m1[0])
    p(f"v_add_u32 v{V_CA}, 4, v{V_CA}")
    p(f"s_cmp_lg_u32 s{S_T0}, 4")
    p(f"s_cbranch_scc1 L1_{kind}_late")
    p.label(f"L1_{kind}_go")
    ex = {}
    for i, r in enumerate(reads(0, 0)):
        ex.setdefault(i if nq == 4 else i * 2 // 3, []).append(r)
    ex.setdefault(nm - 3, []).append(f"s_sub_u32 s{S_CNT}, s{S_CNT}, 1\ns_cmp_lg_u32 s{S_CNT}, 0")
    weave(p, m1[1:], ex)
    p(f"s_cbranch_scc1 L1_{kind}_loop")
    ST.t(4)

    ws = sr(SRD_WS, 4)
    p("s_waitcnt lgkmcnt(0)")
    rd = reads(1, 1)
    ex = {}
    for i, r in enumerate(rd):
        ex.setdefault(i // 2, []).append(r)
    weave(p, mh(0), ex)
    p(f"s_waitcnt lgkmcnt({len(rd)-10})")
    for x in mh(1): p(x)
    p("s_waitcnt lgkmcnt(0)")
    NL, ON, SCL = C_K, C_K + 2, C_K + 4
    SH = S_E
    SQ = S_E + 2
    MSK = S_E + 4

    def silu(mp, t, tmp, packed):
        a = AH(t, 2 * mp)
        o = []
        if packed:
            o += [f"v_pk_mul_f32 {vr(tmp+2*j,2)}, {vr(a+2*j,2)}, {vr(NL,2)}" for j in range(4)]
        else:
            o += [f"v_mul_f32 v{tmp+j}, v{a+j}, v{NL}" for j in range(8)]
        o += [f"v_exp_f32 v{tmp+j}, v{tmp+j}" for j in range(8)]
        if packed:
            o += [f"v_pk_add_f32 {vr(tmp+2*j,2)}, {vr(tmp+2*j,2)}, {vr(ON,2)}" for j in range(4)]
        else:
            o += [f"v_add_f32 v{tmp+j}, 1.0, v{tmp+j}" for j in range(8)]
        o += [f"v_rcp_f32 v{tmp+j}, v{tmp+j}" for j in range(8)]
        if packed:
            o += [f"v_pk_mul_f32 {vr(tmp+2*j,2)}, {vr(tmp+2*j,2)}, {vr(a+2*j,2)}" for j in range(4)]
        else:
            o += [f"v_mul_f32 v{tmp+j}, v{tmp+j}, v{a+j}" for j in range(8)]
        o += [f"v_cvt_pk_bf16_f32 v{a+j}, v{tmp+2*j}, v{tmp+2*j+1}" for j in range(4)]
        o += [f"v_permlane16_swap_b32 v{a}, v{a+2}", f"v_permlane16_swap_b32 v{a+1}, v{a+3}"]
        o += [f"buffer_store_dwordx4 {vr(a,4)}, v{C_OH}, {ws}, s{SH+mp} offen offset:{t*1024}{SC1}"]
        return o

    groups = [(mp, t) for mp in range(2) for t in range(3)]
    tmps = [FH(0, 0), FH(1, 0)]
    first = silu(0, 0, tmps[0], False)
    qm = mq(0) + mq(1)
    k = 0
    for m in qm:
        p(m)
        room = 8
        while k < len(first) and room > 0:
            room -= 8 if first[k].startswith(("v_exp", "v_rcp")) else 4
            p(first[k]); k += 1
    for x in first[k:]: p(x)
    ST.t(5)
    for x in silu(0, 1, tmps[1], True): p(x)

    if kind == "g":
        t = V_T
        p(f"v_lshrrev_b32 v{t}, 4, v{V_LANE}")
        p(f"v_mov_b32 v{t+1}, v{AQ(0,0)}")
        for m in range(1, 4):
            p(f"v_cmp_eq_u32 vcc, {m}, v{t}")
            p(f"v_cndmask_b32 v{t+1}, v{t+1}, v{AQ(0,m)}, vcc")
        p(f"v_mul_f32 v{t+1}, v{t+1}, v{NL}")
        p(f"v_exp_f32 v{t+1}, v{t+1}")
        p(f"v_add_f32 v{t+1}, 1.0, v{t+1}")
        p(f"v_rcp_f32 v{t+1}, v{t+1}")
        p(f"buffer_store_dword v{t+1}, v{C_OQ}, {ws}, s{SQ} offen")
    else:
        for t in range(4):
            for mp in range(2):
                a = AQ(t, 2 * mp)
                if kind == "qk":
                    for j in range(4):
                        p(f"v_pk_mul_f32 {vr(a+2*j,2)}, {vr(a+2*j,2)}, {vr(SCL,2)}")
                for j in range(4):
                    p(f"v_cvt_pk_bf16_f32 v{a+j}, v{a+2*j}, v{a+2*j+1}")
            if kind == "qk":
                p(f"s_mov_b64 exec, {sr(MSK+2*t,2)}")
                for mp in range(2):
                    a = AQ(t, 2 * mp)
                    p(f"v_permlane16_swap_b32 v{a}, v{a+2}")
                    p(f"v_permlane16_swap_b32 v{a+1}, v{a+3}")
                p("s_mov_b64 exec, -1")
            for mp in range(2):
                p(f"buffer_store_dwordx4 {vr(AQ(t,2*mp),4)}, v{C_OQ+t}, {ws}, s{SQ+mp} offen{SC1}")
    ST.t(6)
    for i, (mp, t) in enumerate(groups[2:]):
        for x in silu(mp, t, tmps[i & 1], True): p(x)
    ST.flush(9, SRD_WS, S_WAVE, 2)
    p("s_endpgm")
    p.label(f"L1_{kind}_late")
    poll(p, 0, 0)
    p(f"s_branch L1_{kind}_go")


def compute(p, ST):
    t = V_T
    WM, WN, SL = S_WR, S_WRH, S_SX
    p(f"v_lshlrev_b32 v{t}, 2, v{V_LANE}")
    p(f"v_mov_b32 v{t+1}, 0")
    p(f"v_add_u32 v{t}, {CNT}, v{t}")
    p(f"ds_write_b32 v{t}, v{t+1}")
    p(f"s_and_b32 s{WM}, s{S_WAVE}, 1")
    p(f"s_bfe_u32 s{WN}, s{S_WAVE}, 0x10001")
    p(f"v_mov_b32 v{V_CA}, {CNT}")
    p(f"v_mov_b32 v{V_ONE}, 1")
    p("s_waitcnt lgkmcnt(0)")
    p("s_barrier")
    srd(p, SRD_X, 4, 2048 * 1280)
    srd(p, SRD_WS, 20, WS_BYTES)
    r, kg, r4, c4 = t, t + 1, t + 2, t + 3
    p(f"v_and_b32 v{r}, 15, v{V_LANE}")
    p(f"v_lshrrev_b32 v{kg}, 4, v{V_LANE}")
    p(f"v_bfe_u32 v{r4}, v{V_LANE}, 2, 2")
    p(f"v_and_b32 v{c4}, 3, v{V_LANE}")
    p(f"v_lshrrev_b32 v{t+4}, 1, v{r}")
    p(f"v_xor_b32 v{t+4}, v{t+4}, v{kg}")
    p(f"v_lshlrev_b32 v{t+4}, 4, v{t+4}")
    p(f"v_lshl_add_u32 v{t+4}, v{r}, 7, v{t+4}")
    p(f"s_lshl_b32 s{S_T0}, s{WM}, 13")
    p(f"v_add_u32 v{C_XA}, s{S_T0}, v{t+4}")
    p(f"v_xor_b32 v{C_XA+1}, 64, v{C_XA}")
    p(f"v_lshl_add_u32 v{t+4}, v{kg}, 3, v{r4}")
    p(f"v_and_b32 v{t+5}, 1, v{kg}")
    p(f"v_lshl_or_b32 v{t+6}, v{t+5}, 2, v{r4}")
    p(f"s_lshl_b32 s{S_T0}, s{WN}, 2")
    for q in range(4):
        p(f"s_add_u32 s{S_T1}, s{S_T0}, {q}")
        p(f"v_xor_b32 v{C_QA+q}, s{S_T1}, v{t+6}")
        p(f"v_lshlrev_b32 v{C_QA+q}, 5, v{C_QA+q}")
        p(f"v_lshl_add_u32 v{C_QA+q}, v{t+4}, 8, v{C_QA+q}")
        p(f"v_lshl_add_u32 v{C_QA+q}, v{c4}, 3, v{C_QA+q}")
    p(f"v_mul_u32_u24 v{t+4}, 192, v{t+4}")
    p(f"v_lshl_add_u32 v{t+4}, v{c4}, 3, v{t+4}")
    p(f"s_mul_i32 s{S_T0}, s{WN}, 3")
    for q in range(3):
        p(f"s_add_u32 s{S_T1}, s{S_T0}, {q}")
        p(f"v_xor_b32 v{C_HA+q}, s{S_T1}, v{t+5}")
        p(f"v_lshl_add_u32 v{C_HA+q}, v{C_HA+q}, 5, v{t+4}")
    p(f"v_lshlrev_b32 v{C_GA}, 4, v{kg}")
    p(f"v_add_u32 v{C_GA}, {GW}, v{C_GA}")
    if PFD:
        p(f"s_lshr_b32 s{S_T0}, s2, 3")
        p(f"s_lshl_b32 s{S_T1}, s{S_T0}, 2")
        p(f"s_and_b32 s{S_T2}, s{S_WAVE}, 3")
        p(f"s_add_u32 s{S_T1}, s{S_T1}, s{S_T2}")
        p(f"s_and_b32 s{S_T2}, s2, 1")
        p(f"s_lshl_b32 s{S_T2}, s{S_T2}, 7")
        p(f"s_add_u32 s{S_T1}, s{S_T1}, s{S_T2}")
        p(f"s_mul_i32 s{S_T1}, s{S_T1}, {8*1280}")
        p(f"v_lshrrev_b32 v{t+4}, 3, v{V_LANE}")
        p(f"v_and_b32 v{t+5}, 7, v{V_LANE}")
        p(f"v_lshlrev_b32 v{t+5}, 7, v{t+5}")
        p(f"v_mul_u32_u24 v{t+6}, 1280, v{t+4}")
        p(f"v_add_u32 v{SET[0]}, v{t+6}, v{t+5}")
        p(f"s_lshl_b32 s{S_T0}, s{S_T0}, 1")
        p(f"s_add_u32 s{S_T0}, s{S_T0}, s{WM}")
        p(f"s_lshl_b32 s{S_T0}, s{S_T0}, 3")
        p(f"s_add_u32 s{S_T0}, s{S_T0}, 128")
        p(f"s_bfe_u32 s{S_T2}, s2, 0x20001")
        p(f"s_cmp_eq_u32 s{WN}, 0")
        p(f"s_cselect_b32 s{SRD_T}, s6, s12")
        p(f"s_cselect_b32 s{SRD_T+1}, s7, s13")
        ssel(p, SRD_T + 2, 640 * 3840, 640 * 3072)
        p(f"s_mov_b32 s{SRD_T+3}, 0x00020000")
        ssel(p, S_T3, 3840, 3072)
        ssel(p, S_SPIN, 1024, 768)
        p(f"s_mul_i32 s{S_T0}, s{S_T0}, s{S_T3}")
        p(f"s_mul_i32 s{S_T2}, s{S_T2}, s{S_SPIN}")
        p(f"s_add_u32 s{S_T0}, s{S_T0}, s{S_T2}")
        p(f"s_sub_u32 s{S_SPIN}, s{S_SPIN}, 128")
        p(f"s_cmp_eq_u32 s{S_T2}, 3072")
        p(f"s_cmov_b32 s{S_SPIN}, 640")
        p(f"v_min_u32 v{t+5}, s{S_SPIN}, v{t+5}")
        p(f"v_mad_u32_u24 v{SET[0]+1}, v{t+4}, s{S_T3}, v{t+5}")
        p(f"s_sleep {PFD}")
        p(f"buffer_load_dword v{C_PF}, v{SET[0]}, {sr(SRD_X,4)}, s{S_T1} offen offset:256")
        p(f"buffer_load_dword v{C_PF+1}, v{SET[0]+1}, {sr(SRD_T,4)}, s{S_T0} offen")
    for i in range(112):
        p(f"v_mov_b32 v{ACC+i}, 0")
    NL, ON, SCL = C_K, C_K + 2, C_K + 4
    for j in range(2):
        p(f"v_mov_b32 v{NL+j}, {f32bits(-1.4426950408889634):#x}")
        p(f"v_mov_b32 v{ON+j}, 1.0")
    SH, SQ, MSK = S_E, S_E + 2, S_E + 4
    MT = S_SQ
    tok = t + 2
    p(f"v_lshrrev_b32 v{t+4}, 3, v{r}")
    p(f"v_lshlrev_b32 v{t+4}, 4, v{t+4}")
    p(f"v_and_b32 v{t+5}, 7, v{r}")
    p(f"v_add_u32 v{t+4}, v{t+4}, v{t+5}")
    p(f"v_and_b32 v{t+5}, 1, v{kg}")
    p(f"v_lshl_add_u32 v{tok}, v{t+5}, 3, v{t+4}")
    p(f"v_lshrrev_b32 v{c4}, 1, v{kg}")
    p(f"v_lshlrev_b32 v{C_OH}, 4, v{tok}")
    p(f"v_lshl_add_u32 v{C_OH}, v{c4}, 9, v{C_OH}")
    p(f"s_lshl_b32 s{MT}, s{S_RB}, 2")
    p(f"s_lshl_b32 s{S_T0}, s{WM}, 1")
    p(f"s_add_u32 s{MT}, s{MT}, s{S_T0}")
    p(f"s_lshl_b32 s{SL}, s{S_CG}, 1")
    p(f"s_add_u32 s{SL}, s{SL}, s{WN}")
    p(f"s_mul_i32 s{S_T0}, s{MT}, 96")
    p(f"s_mul_i32 s{S_T1}, s{SL}, 3")
    p(f"s_add_u32 s{S_T0}, s{S_T0}, s{S_T1}")
    p(f"s_lshl_b32 s{S_T0}, s{S_T0}, 10")
    p(f"s_add_u32 s{SH}, s{S_T0}, {HOFF}")
    p(f"s_add_u32 s{SH+1}, s{S_T0}, {HOFF+96*1024}")
    ST.t(2)
    p(f"s_cmp_ge_u32 s{S_CG}, 10")
    p("s_cbranch_scc1 L1_vg")

    HS, TS = S_T2, S_T3
    qs = f32bits(20 ** -0.5 * 1.4426950408889634)
    p(f"s_cmp_lt_u32 s{S_CG}, 5")
    p(f"s_cselect_b32 s{S_T0}, {qs:#x}, 1.0")
    ssel(p, HS, 64 * 1280, KVH)
    ssel(p, TS, 1280, KVT)
    ssel(p, SQ, QOFF, KVOFF)
    p(f"s_cselect_b32 s{S_T1}, 0, 10")
    p(f"v_mov_b32 v{SCL}, s{S_T0}")
    p(f"v_mov_b32 v{SCL+1}, s{S_T0}")
    p(f"s_sub_u32 s{SL}, s{SL}, s{S_T1}")
    p(f"s_lshl_b32 s{SL}, s{SL}, 3")
    p(f"s_mul_i32 s{S_T0}, s{MT}, s{TS}")
    p(f"s_add_u32 s{SQ}, s{SQ}, s{S_T0}")
    p(f"s_add_u32 s{SQ+1}, s{SQ}, s{TS}")
    a, b, c, d = SET[0] + 4, SET[0] + 5, SET[0] + 6, SET[0] + 7
    p(f"v_lshlrev_b32 v{tok}, 4, v{tok}")
    p(f"v_lshlrev_b32 v{r}, 4, v{r}")
    p(f"v_add_u32 v{r}, 1024, v{r}")
    for q in range(4):
        p(f"s_add_u32 s{S_T0}, s{SL}, {2*q}")
        p(f"v_add_u32 v{a}, s{S_T0}, v{c4}")
        p(f"v_mul_u32_u24 v{b}, 205, v{a}")
        p(f"v_lshrrev_b32 v{b}, 10, v{b}")
        p(f"v_mul_u32_u24 v{c}, 5, v{b}")
        p(f"v_sub_u32 v{a}, v{a}, v{c}")
        p(f"v_cmp_ne_u32 {sr(MSK+2*q,2)}, 2, v{a}")
        p(f"v_cmp_lt_u32 vcc, 2, v{a}")
        p(f"v_cndmask_b32 v{c}, 0, 1, vcc")
        p(f"v_mul_u32_u24 v{d}, 3, v{c}")
        p(f"v_sub_u32 v{a}, v{a}, v{d}")
        p(f"v_lshl_add_u32 v{a}, v{a}, 9, v{tok}")
        p(f"v_cndmask_b32 v{c}, v{t+5}, v{c}, {sr(MSK+2*q,2)}")
        p(f"v_cndmask_b32 v{a}, v{r}, v{a}, {sr(MSK+2*q,2)}")
        p(f"v_lshl_add_u32 v{b}, v{b}, 1, v{c}")
        p(f"v_mad_u32_u24 v{C_OQ+q}, v{b}, s{HS}, v{a}")
    path(p, ST, "qk")

    p.label("L1_vg")
    p(f"s_cmp_eq_u32 s{S_CG}, 15")
    p("s_cbranch_scc1 L1_g")
    p(f"s_mul_i32 s{S_T0}, s{MT}, {KVT}")
    p(f"s_add_u32 s{SQ}, s{S_T0}, {KVOFF+1280}")
    p(f"s_add_u32 s{SQ+1}, s{S_T0}, {KVOFF+1280+KVT}")
    p(f"s_sub_u32 s{SL}, s{SL}, 20")
    p(f"s_lshl_b32 s{SL}, s{SL}, 6")
    p(f"s_mov_b32 s{S_T2}, {KVH}")
    p(f"v_mul_u32_u24 v{d}, 320, v{kg}")
    for q in range(4):
        p(f"s_add_u32 s{S_T0}, s{SL}, {16*q}")
        p(f"v_add_u32 v{a}, s{S_T0}, v{r}")
        p(f"v_mul_u32_u24 v{b}, 3277, v{a}")
        p(f"v_lshrrev_b32 v{b}, 16, v{b}")
        p(f"v_mul_u32_u24 v{c}, 20, v{b}")
        p(f"v_sub_u32 v{a}, v{a}, v{c}")
        p(f"v_lshl_add_u32 v{a}, v{a}, 4, v{d}")
        p(f"v_mad_u32_u24 v{C_OQ+q}, v{b}, s{S_T2}, v{a}")
    path(p, ST, "v")

    p.label("L1_g")
    p(f"v_lshl_add_u32 v{tok}, v{c4}, 5, v{tok}")
    p(f"v_lshlrev_b32 v{C_OQ}, 2, v{tok}")
    p(f"s_lshl_b32 s{S_T0}, s{MT}, 7")
    p(f"s_add_u32 s{SQ}, s{S_T0}, {GOFF}")
    one = AQ(1, 0)
    for j in range(4):
        p(f"v_mov_b32 v{one+j}, 0x3f803f80")
    p(f"v_and_b32 v{a}, 31, v{V_LANE}")
    p(f"v_mul_u32_u24 v{a}, {KVH}, v{a}")
    p(f"v_mul_u32_u24 v{b}, {KVT}, v{c4}")
    p(f"v_add_u32 v{a}, v{a}, v{b}")
    p(f"s_mul_i32 s{S_T0}, s{MT}, {KVT}")
    p(f"s_add_u32 s{S_T0}, s{S_T0}, {KVOFF}")
    p(f"buffer_store_dwordx4 {vr(one,4)}, v{a}, {sr(SRD_WS,4)}, s{S_T0} offen offset:2560{SC1}")
    path(p, ST, "g")


def build():
    p = Prog()
    p.label(LABEL)
    p("s_cmp_ge_u32 s2, 256")
    p("s_cbranch_scc1 L1_end")
    ST = Stamps(p, 0)
    ST.t(0, True); ST.t(1)
    p("s_load_dwordx16 s[4:19], s[0:1], 0")
    p("s_load_dwordx2 s[20:21], s[0:1], 72")
    p(f"v_and_b32 v{V_LANE}, 63, v0")
    p(f"v_lshrrev_b32 v{V_T}, 6, v0")
    p(f"v_readfirstlane_b32 s{S_WAVE}, v{V_T}")
    p(f"s_and_b32 s{S_RB}, s2, 1")
    p(f"s_lshl_b32 s{S_RB}, s{S_RB}, 3")
    p(f"s_bfe_u32 s{S_T0}, s2, 0x30003")
    p(f"s_add_u32 s{S_RB}, s{S_RB}, s{S_T0}")
    p(f"s_bfe_u32 s{S_CG}, s2, 0x20001")
    p(f"s_lshl_b32 s{S_CG}, s{S_CG}, 2")
    p(f"s_lshr_b32 s{S_T0}, s2, 6")
    p(f"s_add_u32 s{S_CG}, s{S_CG}, s{S_T0}")
    p(f"s_cmp_ge_u32 s{S_WAVE}, 4")
    p("s_cbranch_scc1 L1_compute")
    loader(p, ST)
    p.label("L1_compute")
    compute(p, ST)
    p.label("L1_end")
    p("s_endpgm")
    return header(LABEL) + p.finish(name="k1"), descriptor(LABEL, NV)
```

```python
from common import *

LABEL = "gm_attn_kernel"
LDS = 163840
BLOCK = 768
CNT = 64 * KVT - 1280

SRD_WS = 8
S_WAVE, S_HEAD, S_QT, S_T0, S_T1, S_T2, S_CNT, S_SRC, S_KV, S_SPIN = 12, 13, 14, 15, 16, 17, 18, 19, 20, 21
S_MT, S_NG, S_SA, S_SW = 24, 25, 26, 27

V_LANE = 1
V_KA, V_K2A, V_VA0, V_VA1 = 2, 3, 4, 5
V_T = 6
Q1, Q2 = 12, 16
V_CA, V_ONE = 18, 19
K1, K2, V0, V1 = 20, 24, 28, 32
SS = [40, 56]
PP = 72
OO = 80
V_GATE = 96
NV = 168
UNROLL = 8
PRIO = {0: 2, 3: 1, 6: 0}
PACE = int(os.environ.get('PACE', '0'))


def mf(d, a, b, c):
    cc = "0" if c is None else vr(c, 16)
    return f"v_mfma_f32_32x32x16_bf16 {vr(d,16)}, {vr(a,4)}, {vr(b,4)}, {cc}"


def mf8(d, a, b):
    return f"v_mfma_f32_32x32x8_bf16 {vr(d,16)}, {vr(a,2)}, {vr(b,2)}, {vr(d,16)}"


def lane_offsets(p, kbase, vbase):
    t = V_T
    p(f"v_and_b32 v{t}, 31, v{V_LANE}")
    p(f"v_lshrrev_b32 v{t+1}, 5, v{V_LANE}")
    p(f"v_lshlrev_b32 v{V_KA}, 4, v{V_LANE}")
    p(f"v_lshrrev_b32 v{V_K2A}, 4, v{t}")
    p(f"v_lshlrev_b32 v{V_K2A}, 7, v{V_K2A}")
    p(f"v_and_b32 v{t+2}, 7, v{t}")
    p(f"v_lshl_add_u32 v{V_K2A}, v{t+2}, 4, v{V_K2A}")
    p(f"v_and_or_b32 v{V_K2A}, v{t}, 8, v{V_K2A}")
    p(f"v_lshl_add_u32 v{V_K2A}, v{t+1}, 2, v{V_K2A}")
    p(f"v_add_u32 v{V_K2A}, {kbase+1024}, v{V_K2A}")
    if kbase:
        p(f"v_add_u32 v{V_KA}, {kbase}, v{V_KA}")
    p(f"v_mul_u32_u24 v{t+2}, 320, v{t+1}")
    p(f"v_lshl_add_u32 v{t+2}, v{t}, 4, v{t+2}")
    if vbase:
        p(f"v_add_u32 v{t+2}, {vbase}, v{t+2}")
    p(f"v_add_u32 v{t+3}, 640, v{t+2}")
    p(f"v_mov_b32 v{t+4}, {vbase+1280}")
    p(f"v_cmp_gt_u32 vcc, 20, v{t}")
    p(f"v_cndmask_b32 v{V_VA0}, v{t+4}, v{t+2}, vcc")
    p(f"v_cndmask_b32 v{V_VA1}, v{t+4}, v{t+3}, vcc")


def set_shift(p, m):
    t = V_T
    p(f"v_mov_b32 v{t}, v{m}")
    p(f"v_permlane32_swap_b32 v{m}, v{t}")
    p(f"v_max_f32 v{m}, v{m}, v{t}")
    p(f"v_cvt_pk_bf16_f32 v{m}, -v{m}, 0")
    p(f"v_cmp_gt_u32 vcc, 32, v{V_LANE}")
    p(f"v_cndmask_b32 v{Q2+1}, 0, v{m}, vcc")


def max16(p, dst, s, first):
    k = 0
    if first:
        p(f"v_max3_f32 v{dst}, v{s}, v{s+1}, v{s+2}")
        p(f"v_max_f32 v{dst}, v{dst}, v{s+3}")
        k = 4
    while k < 16:
        p(f"v_max3_f32 v{dst}, v{dst}, v{s+k}, v{s+k+1}")
        k += 2


_uid = [0]


def poll(p, off, want, vt, nap=1):
    _uid[0] += 1
    n = _uid[0]
    p(f"s_mov_b32 s{S_SPIN}, 0x40000")
    p.label(f"L2_poll{n}")
    p(f"ds_read_b32 v{vt}, v{V_CA} offset:{off}")
    p("s_waitcnt lgkmcnt(0)")
    p(f"v_readfirstlane_b32 s{S_T0}, v{vt}")
    p(f"s_cmp_eq_u32 s{S_T0}, {want}")
    p(f"s_cbranch_scc1 L2_got{n}")
    p(f"s_sleep {nap}")
    p(f"s_sub_u32 s{S_SPIN}, s{S_SPIN}, 1")
    p(f"s_cmp_lg_u32 s{S_SPIN}, 0")
    p(f"s_cbranch_scc1 L2_poll{n}")
    p.label(f"L2_got{n}")


def signal(p, off):
    p("s_mov_b64 exec, 1")
    p(f"ds_add_u32 v{V_CA}, v{V_ONE} offset:{off}")
    p("s_mov_b64 exec, -1")


def tile(p, u, left):
    b = u & 1
    s, sn = SS[b], SS[b ^ 1]
    ex = lambda i: f"v_exp_f32 v{s+i}, v{s+i}"
    def cv(j):
        src = s if j < 6 else sn
        return f"v_cvt_pk_bf16_f32 v{PP+j}, v{src+2*j}, v{src+2*j+1}"
    M = [mf(OO, V0, PP, OO), mf(sn, K1, Q1, None), mf8(sn, K2, Q2), mf(OO, V1, PP + 4, OO)]
    R = [f"ds_read_b128 {vr(V0,4)}, v{V_VA0} offset:{u*KVT}",
         f"ds_read_b128 {vr(K1,4)}, v{V_KA} offset:{u*KVT}",
         f"ds_read_b32 v{K2}, v{V_K2A} offset:{u*KVT}",
         f"ds_read_b128 {vr(V1,4)}, v{V_VA1} offset:{u*KVT}"]
    W = [None, 2, None, 2]
    if left < 2:
        R[1] = R[2] = None
        W = [None, 1, None, 1] if left == 1 else [None, None, 1, 0]
    if left < 1:
        M[1] = M[2] = None
    if u in PRIO:
        p(f"s_setprio {PRIO[u]}")
    for g in range(4):
        e = [ex(4 * g + i) for i in range(4)]
        for x in (M[g], R[g], cv((2 * g - 2) % 8), e[0], cv((2 * g - 1) % 8), e[1], e[2], e[3]):
            if x: p(x)
        if W[g] is not None:
            p(f"s_waitcnt lgkmcnt({W[g]})")


def attention(p, ST):
    ws = sr(SRD_WS, 4)
    t = V_T
    lane_offsets(p, 0, 0)
    p(f"v_and_b32 v{t+3}, 31, v{V_LANE}")
    p(f"v_lshlrev_b32 v{t+3}, 2, v{t+3}")
    p(f"s_lshl_b32 s{S_T0}, s{S_HEAD}, 6")
    p(f"s_add_u32 s{S_T0}, s{S_T0}, s{S_QT}")
    p(f"s_mul_i32 s{S_T0}, s{S_T0}, 1280")
    p(f"s_lshl_b32 s{S_T2}, s{S_QT}, 7")
    p(f"s_add_u32 s{S_T2}, s{S_T2}, {GOFF}")
    p(f"buffer_load_dwordx4 {vr(Q1,4)}, v{V_KA}, {ws}, s{S_T0} offen")
    p(f"buffer_load_dwordx4 {vr(K1,4)}, v{V_KA}, {ws}, s{S_KV} offen")
    p(f"buffer_load_dword v{Q2}, v{V_K2A}, {ws}, s{S_T0} offen")
    p(f"buffer_load_dword v{K2}, v{V_K2A}, {ws}, s{S_KV} offen")
    p(f"buffer_load_dword v{V_GATE}, v{t+3}, {ws}, s{S_T2} offen")
    p("s_barrier")
    p(f"v_add_u32 v{V_KA}, {2*KVT-1280}, v{V_KA}")
    p(f"v_add_u32 v{V_K2A}, {2*KVT-1280}, v{V_K2A}")
    p(f"v_mov_b32 v{K2+1}, 0x3f80")
    p(f"v_mov_b32 v{Q2+1}, 0")
    for r in list(range(V0, V0 + 8)) + list(range(PP, PP + 8)) + list(range(OO, OO + 16)) + list(range(SS[1] + 12, SS[1] + 16)):
        p(f"v_mov_b32 v{r}, 0")
    p(f"s_mov_b32 s{S_CNT}, 0")
    ST.t(2)
    p("s_waitcnt vmcnt(1)")
    p(mf(SS[0], K1, Q1, None))
    p(mf8(SS[0], K2, Q2))
    max16(p, t + 5, SS[0], True)
    set_shift(p, t + 5)
    p(mf(SS[0], K1, Q1, None))
    p(mf8(SS[0], K2, Q2))
    ST.t(3)
    poll(p, 0, 4, t)
    p(f"v_subrev_u32 v{t}, {KVT}, v{V_KA}")
    p(f"v_subrev_u32 v{t+1}, {KVT}, v{V_K2A}")
    p(f"ds_read_b128 {vr(K1,4)}, v{t}")
    p(f"ds_read_b32 v{K2}, v{t+1}")
    ST.t(4)
    p("s_waitcnt lgkmcnt(0)")
    p.label("L2_loop")
    for u in range(UNROLL):
        tile(p, u, 9)
    for r in (V_VA0, V_KA, V_K2A, V_VA1):
        p(f"v_add_u32 v{r}, {UNROLL*KVT}, v{r}")
    p(f"s_add_u32 s{S_CNT}, s{S_CNT}, 1")
    p(f"s_cmp_le_u32 s{S_CNT}, 4")
    p("s_cbranch_scc1 L2_edge")
    p(f"s_cmp_lt_u32 s{S_CNT}, {64//UNROLL-1}")
    p("s_cbranch_scc1 L2_loop")
    for u in range(UNROLL):
        tile(p, u, UNROLL - 1 - u)
    s = SS[1]
    p(mf(OO, V0, PP, OO))
    p(f"v_cvt_pk_bf16_f32 v{PP+6}, v{s+12}, v{s+13}")
    p(f"v_cvt_pk_bf16_f32 v{PP+7}, v{s+14}, v{s+15}")
    p(mf(OO, V1, PP + 4, OO))
    ST.t(6)

    p(f"v_max3_f32 v{t}, |v{OO}|, |v{OO+1}|, |v{OO+2}|")
    for k in range(3, 13, 2):
        p(f"v_max3_f32 v{t}, v{t}, |v{OO+k}|, |v{OO+k+1}|")
    acc_nan = t + 1
    p(f"v_add_f32 v{acc_nan}, v{OO}, v{OO+1}")
    for k in range(2, 13):
        p(f"v_add_f32 v{acc_nan}, v{acc_nan}, v{OO+k}")
    p(f"v_mov_b32 v{t+2}, 0x7b000000")
    p(f"v_cmp_nlt_f32 vcc, v{t}, v{t+2}")
    p(f"v_cmp_u_f32 s[22:23], v{acc_nan}, v{acc_nan}")
    p("s_nop 1")
    p("s_or_b64 vcc, vcc, s[22:23]")
    p("s_cmp_lg_u64 vcc, 0")
    p("s_cbranch_scc1 L2_slow")

    p.label("L2_out")
    p(f"v_rcp_f32 v{t}, v{OO+12}")
    p(f"v_lshlrev_b32 v{t+2}, 4, v{V_LANE}")
    p("s_waitcnt vmcnt(0)")
    p(f"v_mul_f32 v{t}, v{t}, v{V_GATE}")
    p(f"v_mov_b32 v{t+1}, v{t}")
    for k in range(0, 12, 2):
        p(f"v_pk_mul_f32 {vr(OO+k,2)}, {vr(OO+k,2)}, {vr(t,2)}")
    for j in range(6):
        p(f"v_cvt_pk_bf16_f32 v{OO+j}, v{OO+2*j}, v{OO+2*j+1}")
    p(f"s_mul_i32 s{S_T0}, s{S_QT}, 40")
    p(f"s_add_u32 s{S_T1}, s{S_T0}, s{S_HEAD}")
    p(f"s_lshl_b32 s{S_T1}, s{S_T1}, 10")
    p(f"s_add_u32 s{S_T1}, s{S_T1}, {OOFF}")
    p(f"buffer_store_dwordx4 {vr(OO,4)}, v{t+2}, {ws}, s{S_T1} offen")
    p(f"s_lshr_b32 s{S_T1}, s{S_HEAD}, 2")
    p(f"s_add_u32 s{S_T0}, s{S_T0}, s{S_T1}")
    p(f"s_add_u32 s{S_T0}, s{S_T0}, 32")
    p(f"s_lshl_b32 s{S_T0}, s{S_T0}, 10")
    p(f"s_bfe_u32 s{S_T1}, s{S_HEAD}, 0x10001")
    p(f"s_lshl_b32 s{S_T1}, s{S_T1}, 9")
    p(f"s_add_u32 s{S_T0}, s{S_T0}, s{S_T1}")
    p(f"s_and_b32 s{S_T1}, s{S_HEAD}, 1")
    p(f"s_lshl_b32 s{S_T1}, s{S_T1}, 3")
    p(f"s_add_u32 s{S_T0}, s{S_T0}, s{S_T1}")
    p(f"s_add_u32 s{S_T0}, s{S_T0}, {OOFF}")
    p("s_mov_b32 exec_hi, 0")
    p(f"buffer_store_dwordx2 {vr(OO+4,2)}, v{t+2}, {ws}, s{S_T0} offen")
    ST.flush(9, SRD_WS, S_WAVE, 2)
    p("s_endpgm")

    p.label("L2_edge")
    p(f"s_cmp_eq_u32 s{S_CNT}, 3")
    p("s_cbranch_scc1 L2_loop")
    p(f"s_cmp_eq_u32 s{S_CNT}, 4")
    p("s_cbranch_scc1 L2_release")
    p(f"s_lshl_b32 s{S_T1}, s{S_CNT}, 2")
    p(f"v_add_u32 v{V_CA}, s{S_T1}, v{V_CA}")
    poll(p, 0, 4, t)
    p(f"v_mov_b32 v{V_CA}, {CNT}")
    p("s_branch L2_loop")
    p.label("L2_release")
    p("s_waitcnt lgkmcnt(0)")
    signal(p, 12)
    ST.t(5)
    p("s_waitcnt lgkmcnt(0)")
    p("s_branch L2_loop")

    p.label("L2_slow")
    p("s_waitcnt vmcnt(0)")
    lane_offsets(p, 0, 1280)
    p(f"v_mov_b32 v{Q2+1}, 0")
    mx = t + 5
    p(f"v_mov_b32 v{mx}, 0xff800000")
    p(f"s_mov_b32 s{S_CNT}, 0")
    p(f"s_mov_b32 s{S_SRC}, s{S_KV}")
    p.label("L2_maxloop")
    p(f"buffer_load_dwordx4 {vr(K1,4)}, v{V_KA}, {ws}, s{S_SRC} offen")
    p(f"buffer_load_dword v{K2}, v{V_K2A}, {ws}, s{S_SRC} offen")
    p("s_waitcnt vmcnt(0)")
    p(mf(SS[0], K1, Q1, None))
    p(mf8(SS[0], K2, Q2))
    max16(p, mx, SS[0], False)
    p(f"s_add_u32 s{S_SRC}, s{S_SRC}, {KVT}")
    p(f"s_add_u32 s{S_CNT}, s{S_CNT}, 1")
    p(f"s_cmp_lt_u32 s{S_CNT}, 64")
    p("s_cbranch_scc1 L2_maxloop")
    set_shift(p, mx)
    for i in range(16):
        p(f"v_mov_b32 v{OO+i}, 0")
    p(f"s_mov_b32 s{S_CNT}, 0")
    p(f"s_mov_b32 s{S_SRC}, s{S_KV}")
    p.label("L2_slowloop")
    p(f"buffer_load_dwordx4 {vr(K1,4)}, v{V_KA}, {ws}, s{S_SRC} offen")
    p(f"buffer_load_dword v{K2}, v{V_K2A}, {ws}, s{S_SRC} offen")
    p(f"buffer_load_dwordx4 {vr(V0,4)}, v{V_VA0}, {ws}, s{S_SRC} offen")
    p(f"buffer_load_dwordx4 {vr(V1,4)}, v{V_VA1}, {ws}, s{S_SRC} offen")
    p("s_waitcnt vmcnt(0)")
    p(mf(SS[0], K1, Q1, None))
    p(mf8(SS[0], K2, Q2))
    for i in range(16):
        p(f"v_exp_f32 v{SS[0]+i}, v{SS[0]+i}")
    for j in range(8):
        p(f"v_cvt_pk_bf16_f32 v{PP+j}, v{SS[0]+2*j}, v{SS[0]+2*j+1}")
    p(mf(OO, V0, PP, OO))
    p(mf(OO, V1, PP + 4, OO))
    p(f"s_add_u32 s{S_SRC}, s{S_SRC}, {KVT}")
    p(f"s_add_u32 s{S_CNT}, s{S_CNT}, 1")
    p(f"s_cmp_lt_u32 s{S_CNT}, 64")
    p("s_cbranch_scc1 L2_slowloop")
    p("s_nop 7")
    p("s_nop 7")
    p("s_branch L2_out")


G_OA, G_OW, G_G = 2, 3, 8
G_T = 10


def gemm(p, ST):
    ws = sr(SRD_WS, 4)
    acc0, buf0 = 16, 96
    ca, one = 14, 15
    global V_CA, V_ONE
    keep = (V_CA, V_ONE)
    V_CA, V_ONE = ca, one
    t = G_T
    W = S_QT
    p("s_setprio 3")
    p(f"s_sub_u32 s{W}, s{S_WAVE}, 8")
    p(f"v_lshlrev_b32 v{G_OA}, 4, v{V_LANE}")
    p(f"v_lshlrev_b32 v{t}, 2, v{V_LANE}")
    p(f"v_add_u32 v{t}, {CNT}, v{t}")
    p(f"v_mov_b32 v{t+1}, 0")
    p(f"ds_write_b32 v{t}, v{t+1}")
    p(f"s_lshl_b32 s{S_T2}, s{W}, 10")
    p(f"s_add_u32 s{S_SRC}, s{S_KV}, s{S_T2}")
    p(f"s_add_u32 s{S_SRC}, s{S_SRC}, 1280")

    def dma(i):
        p(f"s_add_u32 m0, s{S_T2}, {i*4096}")
        p(f"s_add_u32 s{S_T0}, s{S_SRC}, {i*4096}")
        if i == 39:
            p(f"s_cmp_eq_u32 s{W}, 3")
            p("s_cselect_b32 exec_hi, 0xffff, -1")
        p(f"buffer_load_dwordx4 v{G_OA}, {ws}, s{S_T0} offen lds")
        if i == 39:
            p("s_mov_b32 exec_hi, -1")

    for i in range(0, 6): dma(i)
    p("s_waitcnt lgkmcnt(0)")
    p("s_barrier")
    for i in range(6, 16): dma(i)
    p(f"v_mov_b32 v{ca}, {CNT}")
    p(f"v_mov_b32 v{one}, 1")
    ST.t(2)
    p("s_waitcnt vmcnt(10)")
    signal(p, 0)
    ST.t(3)
    for i in range(16, 28): dma(i)
    p("s_waitcnt vmcnt(17)")
    signal(p, 4)
    for i in range(28, 40): dma(i)
    p(f"s_and_b32 s{S_T0}, s2, 7")
    p(f"s_lshr_b32 s{S_T1}, s2, 3")
    p(f"s_lshr_b32 s{S_MT}, s{S_T0}, 1")
    p(f"s_lshl_b32 s{S_MT}, s{S_MT}, 4")
    p(f"s_lshr_b32 s{S_T2}, s{S_T1}, 1")
    p(f"s_add_u32 s{S_MT}, s{S_MT}, s{S_T2}")
    p(f"s_and_b32 s{S_NG}, s{S_T0}, 1")
    p(f"s_lshl_b32 s{S_NG}, s{S_NG}, 1")
    p(f"s_and_b32 s{S_T2}, s{S_T1}, 1")
    p(f"s_add_u32 s{S_NG}, s{S_NG}, s{S_T2}")
    p(f"s_lshl_b32 s{S_T0}, s{W}, 3")
    p(f"v_add_u32 v{t}, s{S_T0}, v{V_LANE}")
    p(f"v_and_b32 v{t}, 31, v{t}")
    p(f"v_and_b32 v{t+1}, 32, v{V_LANE}")
    p(f"v_or_b32 v{t}, v{t}, v{t+1}")
    p(f"v_lshlrev_b32 v{t}, 4, v{t}")
    for nt in range(5):
        p(f"v_add_u32 v{G_OW+nt}, {nt*136*1024}, v{t}")
    p(f"s_mul_i32 s{S_T2}, s{W}, {24*1024}")
    p(f"s_mul_i32 s{S_SA}, s{S_MT}, {96*1024}")
    p(f"s_add_u32 s{S_SA}, s{S_SA}, s{S_T2}")
    p(f"s_add_u32 s{S_SA}, s{S_SA}, {HOFF}")
    p(f"s_mul_i32 s{S_SW}, s{S_NG}, {5*136*1024}")
    p(f"s_add_u32 s{S_SW}, s{S_SW}, s{S_T2}")
    p(f"s_add_u32 s{S_SW}, s{S_SW}, {WFOFF+40*1024}")
    p(f"v_and_b32 v{t}, 31, v{V_LANE}")
    p(f"v_lshlrev_b32 v{t}, 2, v{t}")
    p(f"s_lshl_b32 s{S_T0}, s{S_MT}, 7")
    p(f"s_add_u32 s{S_T0}, s{S_T0}, {GOFF}")
    p(f"buffer_load_dword v{G_G}, v{t}, {ws}, s{S_T0} offen")

    def loads(u):
        b = buf0 + 24 * u
        p(f"buffer_load_dwordx4 {vr(b,4)}, v{G_OA}, {ws}, s{S_SA} offen offset:{1024*u}")
        for nt in range(5):
            p(f"buffer_load_dwordx4 {vr(b+4+4*nt,4)}, v{G_OW+nt}, {ws}, s{S_SW} offen offset:{1024*u}")

    def mfmas(u):
        b = buf0 + 24 * u
        for nt in range(5):
            p(mf(acc0 + 16 * nt, b + 4 + 4 * nt, b, acc0 + 16 * nt))

    def step(u, reload):
        b = buf0 + 24 * u
        for nt in range(5):
            p(mf(acc0 + 16 * nt, b + 4 + 4 * nt, b, acc0 + 16 * nt))
            if reload:
                p(f"buffer_load_dwordx4 {vr(b+4+4*nt,4)}, v{G_OW+nt}, {ws}, s{S_SW} offen offset:{1024*u}")
                if nt == 4:
                    p(f"buffer_load_dwordx4 {vr(b,4)}, v{G_OA}, {ws}, s{S_SA} offen offset:{1024*u}")
            if PACE:
                p(f"s_sleep {PACE}")

    for u in range(3):
        loads(u)
    for i in range(80):
        p(f"v_mov_b32 v{acc0+i}, 0")
    p("s_waitcnt vmcnt(19)")
    signal(p, 8)
    ST.t(4)
    p(f"s_mov_b32 s{S_CNT}, 7")
    p.label("L2_gloop")
    p(f"s_add_u32 s{S_SA}, s{S_SA}, 3072")
    p(f"s_add_u32 s{S_SW}, s{S_SW}, 3072")
    for u in range(3):
        p("s_waitcnt vmcnt(12)")
        step(u, True)
    p(f"s_sub_u32 s{S_CNT}, s{S_CNT}, 1")
    p(f"s_cmp_lg_u32 s{S_CNT}, 0")
    p("s_cbranch_scc1 L2_gloop")
    for u in range(3):
        p(f"s_waitcnt vmcnt({12-6*u})")
        step(u, False)
    ST.t(5)
    for r in range(1, 4):
        p(f"s_add_u32 s{S_T0}, s{W}, {r}")
        p(f"s_and_b32 s{S_T0}, s{S_T0}, 3")
        p(f"s_mul_i32 s{S_T0}, s{S_T0}, 15360")
        p(f"v_add_u32 v{G_OW+r}, s{S_T0}, v{G_OA}")
    p(f"s_mul_i32 s{S_T0}, s{W}, 15360")
    p(f"v_add_u32 v{G_OW}, s{S_T0}, v{G_OA}")
    p(f"v_sub_f32 v{G_G}, 1.0, v{G_G}")
    p(f"v_mov_b32 v{G_G+1}, v{G_G}")
    poll(p, 12, 8, t, 8)
    for nt in range(5):
        for r in range(1, 4):
            p(f"ds_write_b128 v{G_OW+r}, {vr(acc0+16*nt+4*r,4)} offset:{((r-1)*5+nt)*1024}")
    p("s_waitcnt lgkmcnt(0)")
    signal(p, 16)
    poll(p, 16, 4, t, 4)
    ST.t(6)
    for nt in range(5):
        for r in range(1, 4):
            p(f"ds_read_b128 {vr(acc0+16*nt+4*r,4)}, v{G_OW} offset:{((r-1)*5+nt)*1024}")
    p(f"s_mul_i32 s{S_T0}, s{S_MT}, {160*512}")
    p(f"s_mul_i32 s{S_T1}, s{S_NG}, {40*512}")
    p(f"s_add_u32 s{S_T0}, s{S_T0}, s{S_T1}")
    p(f"s_lshl_b32 s{S_T1}, s{W}, 10")
    p(f"s_add_u32 s{S_T0}, s{S_T0}, s{S_T1}")
    p(f"s_add_u32 s{S_T0}, s{S_T0}, {BOFF}")
    for nt in range(5):
        a = acc0 + 16 * nt
        p(f"s_waitcnt lgkmcnt({0 if DIAG else 3*(4-nt)})")
        for h in range(2):
            p(f"v_pk_add_f32 {vr(a+2*h,2)}, {vr(a+2*h,2)}, {vr(a+4+2*h,2)}")
            p(f"v_pk_add_f32 {vr(a+8+2*h,2)}, {vr(a+8+2*h,2)}, {vr(a+12+2*h,2)}")
        for h in range(2):
            p(f"v_pk_add_f32 {vr(a+2*h,2)}, {vr(a+2*h,2)}, {vr(a+8+2*h,2)}")
        for h in range(2):
            p(f"v_pk_mul_f32 {vr(a+2*h,2)}, {vr(a+2*h,2)}, {vr(G_G,2)}")
        p(f"buffer_store_dwordx4 {vr(a,4)}, v{G_OA}, {ws}, s{S_T0} offen sc1")
        p(f"s_add_u32 s{S_T0}, s{S_T0}, 4096")
    ST.flush(9, SRD_WS, S_WAVE, 2)
    V_CA, V_ONE = keep


def build():
    p = Prog()
    p.label(LABEL)
    p("s_cmp_ge_u32 s2, 256")
    p("s_cbranch_scc1 L2_end")
    ST = Stamps(p, 1)
    ST.t(0, True); ST.t(1)
    p("s_load_dwordx2 s[4:5], s[0:1], 72")
    p(f"v_and_b32 v{V_LANE}, 63, v0")
    p(f"v_lshrrev_b32 v{V_T}, 6, v0")
    p(f"v_readfirstlane_b32 s{S_WAVE}, v{V_T}")
    p(f"s_and_b32 s{S_T0}, s2, 7")
    p(f"s_lshr_b32 s{S_T1}, s2, 3")
    p(f"s_lshl_b32 s{S_HEAD}, s{S_T0}, 2")
    p(f"s_lshr_b32 s{S_T2}, s{S_T1}, 3")
    p(f"s_add_u32 s{S_HEAD}, s{S_HEAD}, s{S_T2}")
    p(f"s_and_b32 s{S_QT}, s{S_T1}, 7")
    p(f"s_lshl_b32 s{S_QT}, s{S_QT}, 3")
    p(f"s_add_u32 s{S_QT}, s{S_QT}, s{S_WAVE}")
    p(f"s_mul_i32 s{S_KV}, s{S_HEAD}, {KVH}")
    p(f"s_add_u32 s{S_KV}, s{S_KV}, {KVOFF}")
    p(f"v_mov_b32 v{V_CA}, {CNT}")
    p(f"v_mov_b32 v{V_ONE}, 1")
    p("s_waitcnt lgkmcnt(0)")
    srd(p, SRD_WS, 4, WS_BYTES)
    p(f"s_cmp_ge_u32 s{S_WAVE}, 8")
    p("s_cbranch_scc1 L2_gemm")
    attention(p, ST)
    p.label("L2_gemm")
    gemm(p, ST)
    p.label("L2_end")
    p("s_endpgm")
    return header(LABEL) + p.finish(name="k2"), descriptor(LABEL, NV, 102 if DIAG else 40)
```

```python
from asm import Prog

NAME = "gated_mix__softmax_full_mha__dense_activation_silu__prompt"

QOFF = 0x0000000
KVOFF = 0x0300000
KVT = 2576
KVH = 64 * KVT
HOFF = 0x0900000
OOFF = 0x0F00000
WFOFF = 0x1200000
GOFF = 0x1500000
BOFF = 0x1600000
WS_BYTES = 0x10000000


def srd(p, dst, lo, nbytes):
    p(f"s_mov_b32 s{dst}, s{lo}")
    p(f"s_mov_b32 s{dst+1}, s{lo+1}")
    p(f"s_mov_b32 s{dst+2}, {nbytes}")
    p(f"s_mov_b32 s{dst+3}, 0x00020000")


def vr(a, n):
    return f"v[{a}:{a+n-1}]"


def sr(a, n):
    return f"s[{a}:{a+n-1}]"


def interleave(main, extra, slots=None):
    out = []
    n = len(main)
    if slots is None:
        per = -(-len(extra) // n)
        slots = [per] * n
    k = 0
    for i, m in enumerate(main):
        out.append(m)
        for _ in range(slots[i]):
            if k < len(extra):
                out.append(extra[k]); k += 1
    out.extend(extra[k:])
    return out


def descriptor(label, nvgpr, nsgpr=102, accum=None):
    accum = accum if accum is not None else ((nvgpr + 3) // 4) * 4
    return f""".p2align 6
.amdhsa_kernel {label}
  .amdhsa_next_free_vgpr {nvgpr}
  .amdhsa_next_free_sgpr {nsgpr}
  .amdhsa_accum_offset {accum}
  .amdhsa_group_segment_fixed_size 0
  .amdhsa_kernarg_size 80
  .amdhsa_user_sgpr_count 2
  .amdhsa_user_sgpr_kernarg_segment_ptr 1
  .amdhsa_system_sgpr_workgroup_id_x 1
.end_amdhsa_kernel
"""


def header(label):
    return f""".globl {label}
.p2align 8
.type {label},@function
"""


def ssel(p, dst, a, b):
    p(f"s_mov_b32 s{dst}, {b}")
    p(f"s_cmov_b32 s{dst}, {a}")


import os
DIAG = bool(os.environ.get("DIAG"))
TSOFF = 0x1C00000


class Stamps:
    def __init__(self, p, kid, base=76):
        self.p, self.kid, self.base = p, kid, base

    def t(self, i, real=False):
        if DIAG:
            b = self.base + 2 * i
            self.p(f"s_mem{'real' if real else ''}time s[{b}:{b+1}]")

    def flush(self, n, srd_ws, s_wave, vt):
        if not DIAG:
            return
        p, b = self.p, self.base
        p("s_waitcnt vmcnt(0)")
        self.t(n - 2); self.t(n - 1, True)
        p("s_waitcnt lgkmcnt(0)")
        p(f"s_lshl_b32 s{b-1}, s2, 4")
        p(f"s_add_u32 s{b-1}, s{b-1}, s{s_wave}")
        p(f"s_lshl_b32 s{b-1}, s{b-1}, 6")
        p(f"s_add_u32 s{b-1}, s{b-1}, {TSOFF + self.kid * 256 * 16 * 64}")
        p("s_mov_b64 exec, 1")
        p(f"v_mov_b32 v{vt}, 0")
        for i in range(n):
            p(f"v_mov_b32 v{vt+1}, s{b+2*i}")
            p(f"buffer_store_dword v{vt+1}, v{vt}, s[{srd_ws}:{srd_ws+3}], s{b-1} offen offset:{4*i}")


TROFF = 0x1D00000


class Trace:
    PAIRS = [96, 98, 100, 72]

    def __init__(self, p, kid, vtr, vlane, ix=94):
        self.p, self.kid, self.v, self.lane, self.ix = p, kid, vtr, vlane, ix

    def init(self):
        if DIAG:
            self.p(f"s_mov_b32 s{self.ix}, 0")
            self.p(f"v_mov_b32 v{self.v}, 0")

    def t(self, i):
        a = self.PAIRS[i]
        return f"s_memtime s[{a}:{a+1}]" if DIAG else ""

    def put(self, i):
        if not DIAG:
            return ""
        return (f"v_cmp_eq_u32 vcc, s{self.ix}, v{self.lane}\n"
                f"v_mov_b32 v{self.v+1}, s{self.PAIRS[i]}\n"
                f"s_add_u32 s{self.ix}, s{self.ix}, 1\n"
                f"v_cndmask_b32 v{self.v}, v{self.v}, v{self.v+1}, vcc")

    def flush(self, srd_ws, s_wave):
        if not DIAG:
            return
        p, x = self.p, self.ix
        p(f"s_lshl_b32 s{x}, s2, 4")
        p(f"s_add_u32 s{x}, s{x}, s{s_wave}")
        p(f"s_lshl_b32 s{x}, s{x}, 8")
        p(f"s_add_u32 s{x}, s{x}, {TROFF + self.kid * 256 * 16 * 256}")
        p(f"v_lshlrev_b32 v{self.v+1}, 2, v{self.lane}")
        p(f"buffer_store_dword v{self.v}, v{self.v+1}, s[{srd_ws}:{srd_ws+3}], s{x} offen")
```

```python
from common import *
import struct

LABEL = "gm_proj_kernel"
BLOCK = 512
STAGE = 45056
WQ, WH = 16384, 32768
RL = 3 * STAGE
GW = RL + 16384
CNT = GW + 2560
LDS = CNT + 256
SC1 = " sc1" if int(os.environ.get("K1SC1", "1")) else ""
PFG = int(os.environ.get("PFG", "2"))
PF0 = int(os.environ.get("PF0", "1"))
PFN = int(os.environ.get("PFN", "1"))
PFD = int(os.environ.get("PFD", "0"))
ROT = tuple(int(x) for x in os.environ.get("ROT", "0,0").split(","))
HEADN = int(os.environ.get("HEADN", "6"))

SRD_X, SRD_WQ, SRD_WH, SRD_WS, SRD_T = 24, 28, 32, 36, 40
S_WAVE, S_RB, S_CG, S_T0, S_T1, S_T2, S_T3, S_SPIN, S_CNT = 44, 45, 46, 47, 48, 49, 50, 51, 52
S_WR, S_WRH, S_SX, S_SQ, S_SH, S_SLOT = 53, 54, 55, 56, 57, 58
S_ST = 59
S_E = 60
S_PFO, S_PFS, S_PFL = 22, 23, 3

V_LANE, V_CA, V_ONE, V_F = 1, 2, 3, 4
V_T = 5


def f32bits(x):
    return struct.unpack("<I", struct.pack("<f", x))[0]


_uid = [0]


def poll(p, off, nap):
    _uid[0] += 1
    n = _uid[0]
    p(f"s_mov_b32 s{S_SPIN}, 0x40000")
    p.label(f"L1_poll{n}")
    p(f"ds_read_b32 v{V_F}, v{V_CA} offset:{off}")
    p("s_waitcnt lgkmcnt(0)")
    p(f"v_readfirstlane_b32 s{S_T0}, v{V_F}")
    p(f"s_cmp_eq_u32 s{S_T0}, 4")
    p(f"s_cbranch_scc1 L1_got{n}")
    if nap:
        p(f"s_sleep {nap}")
    p(f"s_sub_u32 s{S_SPIN}, s{S_SPIN}, 1")
    p(f"s_cmp_lg_u32 s{S_SPIN}, 0")
    p(f"s_cbranch_scc1 L1_poll{n}")
    p.label(f"L1_got{n}")


def signal(off):
    return (f"s_mov_b64 exec, 1\n"
            f"ds_add_u32 v{V_CA}, v{V_ONE} offset:{off}\n"
            f"s_mov_b64 exec, -1")


L_OX, L_OQ, L_OH = 12, 13, 14
L_D = 20


def dma_groups():
    g = []
    for jj in range(4):
        g.append(f"s_add_u32 m0, s{S_WR}, {jj*4096}\n"
                 f"s_add_u32 s{S_T0}, s{S_SX}, {jj*40960}\n"
                 f"buffer_load_dwordx4 v{L_OX}, {sr(SRD_X,4)}, s{S_T0} offen lds")
    for i in range(3):
        g.append(f"s_add_u32 m0, s{S_WRH}, {WH+i*1024}\n"
                 f"s_nop 0\n"
                 f"buffer_load_dwordx4 v{L_OH+i}, {sr(SRD_WH,4)}, s{S_SH} offen lds")
    for jj in range(4):
        g.append(f"s_add_u32 m0, s{S_WR}, {WQ+jj*4096}\n"
                 f"s_add_u32 s{S_T0}, s{S_SQ}, {jj*16*3840}\n"
                 f"buffer_load_dwordx4 v{L_OQ}, {sr(SRD_WQ,4)}, s{S_T0} offen lds")
    return g


def advance(p):
    p(f"s_add_u32 s{S_SX}, s{S_SX}, 128")
    p(f"s_add_u32 s{S_SQ}, s{S_SQ}, {64*3840}")
    p(f"s_add_u32 s{S_SH}, s{S_SH}, {64*3072}")
    if ROT != (0, 0):
        p(f"s_add_u32 s{S_ST}, s{S_ST}, 1")
        p(f"s_cmp_eq_u32 s{S_ST}, 10")
        for r, n in ((S_SX, 1280), (S_SQ, 640 * 3840), (S_SH, 640 * 3072)):
            p(f"s_cselect_b32 s{S_T1}, {n}, 0")
            p(f"s_sub_u32 s{r}, s{r}, s{S_T1}")
            p(f"s_cmp_eq_u32 s{S_ST}, 10")
    p(f"s_cmp_ge_u32 s{S_WR}, {2*STAGE}")
    ssel(p, S_T1, -2 * STAGE, STAGE)
    p(f"s_add_u32 s{S_WR}, s{S_WR}, s{S_T1}")
    p(f"s_add_u32 s{S_WRH}, s{S_WRH}, s{S_T1}")


def relayout_issue(p, f):
    u, ks, np_, t1, t2, hm, dd = (S_E + i for i in range(7))
    dst = S_E + 8 + f
    t = V_T
    p(f"s_mul_i32 s{ks}, s{u}, 6554")
    p(f"s_lshr_b32 s{ks}, s{ks}, 16")
    p(f"s_mul_i32 s{t1}, s{ks}, 10")
    p(f"s_sub_u32 s{np_}, s{u}, s{t1}")
    p(f"s_mul_i32 s{t2}, s{np_}, 272")
    p(f"s_add_u32 s{t2}, s{t2}, s{ks}")
    p(f"s_lshl_b32 s{t2}, s{t2}, 10")
    p(f"s_add_u32 s{dst}, s{t2}, {WFOFF}")
    p(f"s_mul_i32 s{t1}, s{ks}, 20")
    p(f"s_sub_u32 s{t2}, s{ks}, 32")
    p(f"s_mul_i32 s{t2}, s{t2}, 80")
    p(f"s_add_u32 s{t2}, s{t2}, 16")
    p(f"s_cmp_lt_u32 s{ks}, 32")
    p(f"s_cselect_b32 s{t1}, s{t1}, s{t2}")
    ssel(p, hm, 4 * 1280, 40 * 1280)
    ssel(p, dd, 8 * 1280, 20 * 1280)
    p(f"s_sub_u32 s{t2}, s{ks}, 40")
    p(f"s_lshl_b32 s{t2}, s{t2}, 4")
    p(f"s_cmp_lt_u32 s{ks}, 40")
    p(f"s_cselect_b32 s{t1}, s{t1}, s{t2}")
    p(f"s_cselect_b32 s{hm}, s{hm}, {8*1280}")
    p(f"s_cselect_b32 s{dd}, s{dd}, {4*1280}")
    p(f"s_cselect_b32 s{SRD_T}, s8, s14")
    p(f"s_cselect_b32 s{SRD_T+1}, s9, s15")
    ssel(p, SRD_T + 2, 640 * 1280, 1536 * 1280)
    p(f"s_mov_b32 s{SRD_T+3}, 0x00020000")
    p(f"s_mul_i32 s{t1}, s{t1}, 1280")
    p(f"s_lshl_b32 s{t2}, s{np_}, 7")
    p(f"s_add_u32 s{t1}, s{t1}, s{t2}")
    p(f"s_add_u32 s{t2}, s{t1}, s{hm}")
    p(f"v_lshrrev_b32 v{t}, 5, v{V_LANE}")
    p(f"v_bfe_u32 v{t+1}, v{V_LANE}, 3, 2")
    p(f"v_mul_u32_u24 v{t+1}, 1280, v{t+1}")
    p(f"v_mad_u32_u24 v{t}, v{t}, s{dd}, v{t+1}")
    p(f"v_and_b32 v{t+1}, 7, v{V_LANE}")
    p(f"v_lshl_add_u32 v{t}, v{t+1}, 4, v{t}")
    p(f"s_lshl_b32 s{hm}, s{S_WAVE}, 12")
    for hf, so in ((0, t1), (1, t2)):
        p(f"s_add_u32 m0, s{hm}, {RL+f*2048+hf*1024}")
        p("s_nop 0")
        p(f"buffer_load_dwordx4 v{t}, {sr(SRD_T,4)}, s{so} offen lds")


def relayout_store(p, f):
    dst = S_E + 8 + f
    a, o = V_T + 2, V_T + 3
    for nt in range(2):
        for h in range(2):
            p(f"ds_read_b64_tr_b16 {vr(L_D+8*f+4*nt+2*h,2)}, v{a} offset:{f*2048+h*512+nt*64}")
    p(f"s_add_u32 s{S_T0}, s{dst}, {136*1024}")
    p("s_waitcnt lgkmcnt(0)")
    p(f"buffer_store_dwordx4 {vr(L_D+8*f,4)}, v{o}, {sr(SRD_WS,4)}, s{dst} offen{SC1}")
    p(f"buffer_store_dwordx4 {vr(L_D+8*f+4,4)}, v{o}, {sr(SRD_WS,4)}, s{S_T0} offen{SC1}")


def loader(p, ST):
    t = V_T
    p("s_setprio 3")
    p(f"s_and_b32 s{S_T0}, s{S_WAVE}, 1")
    p(f"s_lshr_b32 s{S_T1}, s{S_WAVE}, 1")
    p(f"s_lshl_b32 s{S_T2}, s{S_T0}, 2")
    p(f"v_lshrrev_b32 v{t}, 4, v{V_LANE}")
    p(f"v_add_u32 v{t+1}, s{S_T2}, v{t}")
    p(f"v_and_b32 v{t+2}, 7, v{V_LANE}")
    p(f"v_xor_b32 v{t+1}, v{t+1}, v{t+2}")
    p(f"v_lshrrev_b32 v{t+2}, 3, v{V_LANE}")
    p(f"v_mul_u32_u24 v{t+2}, 1280, v{t+2}")
    p(f"v_lshl_add_u32 v{L_OX}, v{t+1}, 4, v{t+2}")
    p(f"s_lshl_b32 s{S_SX}, s{S_RB}, 4")
    p(f"s_lshl_b32 s{S_T2}, s{S_T0}, 1")
    p(f"s_add_u32 s{S_SX}, s{S_SX}, s{S_T2}")
    p(f"s_add_u32 s{S_SX}, s{S_SX}, s{S_T1}")
    p(f"s_mul_i32 s{S_SX}, s{S_SX}, {8*1280}")
    p(f"s_lshl_b32 s{S_WR}, s{S_WAVE}, 10")
    p(f"s_mul_i32 s{S_WRH}, s{S_WAVE}, 3072")
    p(f"s_lshl_b32 s{S_T2}, s{S_T1}, 2")
    p(f"v_or_b32 v{t+1}, s{S_T2}, v{t}")
    p(f"v_lshlrev_b32 v{t+1}, 1, v{t+1}")
    p(f"v_and_b32 v{t+2}, 15, v{V_LANE}")
    p(f"v_xor_b32 v{t+1}, v{t+1}, v{t+2}")
    p(f"v_mul_u32_u24 v{t+2}, 3840, v{t}")
    p(f"v_lshl_add_u32 v{L_OQ}, v{t+1}, 4, v{t+2}")
    p(f"s_min_u32 s{S_T2}, s{S_CG}, 14")
    p(f"s_lshl_b32 s{S_T2}, s{S_T2}, 8")
    p(f"s_mul_i32 s{S_SQ}, s{S_WAVE}, {4*3840}")
    p(f"s_add_u32 s{S_SQ}, s{S_SQ}, s{S_T2}")
    for i in range(3):
        p(f"v_add_u32 v{t}, {64*i}, v{V_LANE}")
        p(f"v_mul_u32_u24 v{t+1}, 171, v{t}")
        p(f"v_lshrrev_b32 v{t+1}, 11, v{t+1}")
        p(f"v_mul_u32_u24 v{t+2}, 12, v{t+1}")
        p(f"v_sub_u32 v{t}, v{t}, v{t+2}")
        p(f"v_lshrrev_b32 v{t+2}, 3, v{t+1}")
        p(f"v_lshlrev_b32 v{t+2}, 1, v{t+2}")
        p(f"v_xor_b32 v{t}, v{t}, v{t+2}")
        p(f"v_mul_u32_u24 v{t+1}, 3072, v{t+1}")
        p(f"v_lshl_add_u32 v{L_OH+i}, v{t}, 4, v{t+1}")
    p(f"s_mul_i32 s{S_SH}, s{S_WAVE}, {16*3072}")
    p(f"s_mul_i32 s{S_T2}, s{S_CG}, 192")
    p(f"s_add_u32 s{S_SH}, s{S_SH}, s{S_T2}")
    if ROT != (0, 0):
        for r, n in ((S_SX, 128), (S_SQ, 64 * 3840), (S_SH, 64 * 3072)):
            p(f"s_mul_i32 s{S_T2}, s{S_ST}, {n}")
            p(f"s_add_u32 s{r}, s{r}, s{S_T2}")
    p(f"v_lshlrev_b32 v{t+3}, 4, v{V_LANE}")
    p(f"v_mov_b32 v{V_CA}, {CNT}")
    p(f"v_mov_b32 v{V_ONE}, 1")
    p("s_waitcnt lgkmcnt(0)")
    srd(p, SRD_X, 4, 2048 * 1280)
    srd(p, SRD_WH, 12, 640 * 3072)
    srd(p, SRD_WQ, 6, 640 * 3840)
    g = dma_groups()
    ST.t(2)
    for x in g: p(x)
    advance(p)
    srd(p, SRD_T, 16, 1280)
    p(f"s_and_b32 s{S_T0}, s{S_WAVE}, 1")
    p(f"s_mul_i32 s{S_T0}, s{S_T0}, 640")
    p(f"s_mul_i32 s{S_T1}, s{S_WAVE}, 640")
    p(f"s_add_u32 m0, s{S_T1}, {GW}")
    p("s_mov_b32 exec_hi, 0xff")
    p(f"buffer_load_dwordx4 v{t+3}, {sr(SRD_T,4)}, s{S_T0} offen lds")
    p("s_mov_b32 exec_hi, -1")
    ST.t(3)
    srd(p, SRD_WS, 20, WS_BYTES)
    p(f"s_mov_b32 s{S_CNT}, 9")
    p("s_branch L1_fill")
    p.label("L1_lloop")
    poll(p, 64, 1)
    for i in range(4): p(TR.put(i))
    p.label("L1_fill")
    p(TR.t(0))
    for x in g[:HEADN]: p(x)
    p(TR.t(1))
    p(f"s_waitcnt vmcnt({HEADN})")
    p(TR.t(2))
    p(signal(0))
    for x in g[HEADN:]: p(x)
    p(TR.t(3))
    advance(p)
    p(f"v_add_u32 v{V_CA}, 4, v{V_CA}")
    p(f"s_sub_u32 s{S_CNT}, s{S_CNT}, 1")
    p(f"s_cmp_lg_u32 s{S_CNT}, 0")
    p("s_cbranch_scc1 L1_lloop")
    ST.t(4)
    ST.t(5)
    p(f"s_lshl_b32 s{S_E}, s{S_WAVE}, 8")
    p(f"s_add_u32 s{S_E}, s{S_E}, s2")
    relayout_issue(p, 0)
    p("s_waitcnt vmcnt(2)")
    p(signal(0))
    ST.t(6)
    p(f"v_lshrrev_b32 v{t}, 5, v{V_LANE}")
    p(f"v_bfe_u32 v{t+1}, v{V_LANE}, 2, 2")
    p(f"v_lshl_add_u32 v{t}, v{t}, 3, v{t+1}")
    p(f"v_lshlrev_b32 v{t}, 7, v{t}")
    p(f"v_bfe_u32 v{t+1}, v{V_LANE}, 4, 1")
    p(f"v_lshl_add_u32 v{t}, v{t+1}, 5, v{t}")
    p(f"v_and_b32 v{t+1}, 3, v{V_LANE}")
    p(f"v_lshl_add_u32 v{t}, v{t+1}, 3, v{t}")
    p(f"s_lshl_b32 s{S_T0}, s{S_WAVE}, 12")
    p(f"s_add_u32 s{S_T0}, s{S_T0}, {RL}")
    p(f"v_add_u32 v{t+2}, s{S_T0}, v{t}")
    p(f"s_add_u32 s{S_E}, s{S_E}, 1024")
    p(f"s_cmp_ge_u32 s{S_E}, 1360")
    p("s_cbranch_scc1 L1_rl0")
    relayout_issue(p, 1)
    p("s_waitcnt vmcnt(0)")
    relayout_store(p, 1)
    p.label("L1_rl0")
    p("s_waitcnt vmcnt(0)")
    relayout_store(p, 0)
    TR.flush(SRD_WS, S_WAVE)
    ST.flush(9, SRD_WS, S_WAVE, 2)
    p("s_endpgm")


C_XA, C_QA, C_HA = 12, 14, 18
C_GA = 21
C_OQ, C_OH = 22, 26
C_K = 28
C_PF = 34
SET = [36, 80]
ACC = 124
NV = 240
X = lambda s, m: SET[s] + 4 * m
FH = lambda s, t: SET[s] + 16 + 4 * t
FQ = lambda s, t: SET[s] + 28 + 4 * t
AH = lambda t, m: ACC + 4 * (4 * t + m)
AQ = lambda t, m: ACC + 48 + 4 * (4 * t + m)


def mf(d, a, b):
    return f"v_mfma_f32_16x16x32_bf16 {vr(d,4)}, {vr(a,4)}, {vr(b,4)}, {vr(d,4)}"


from asm import Ins


class Lds:
    def __init__(self, p, pend=()):
        self.p, self.pend = p, list(pend)

    def __call__(self, text):
        for ln in text.split("\n"):
            if not ln.strip():
                continue
            i = Ins(ln.strip())
            last = max([k for k, w in enumerate(self.pend) if w & i.r], default=-1)
            if last >= 0:
                left = min(14, len(self.pend) - 1 - last)
                self.p(f"s_waitcnt lgkmcnt({left})")
                self.pend = self.pend[len(self.pend) - left:] if left else []
            self.p(ln)
            if i.kind == "ds":
                self.pend.append(set(i.w))

    def weave(self, main, extra):
        for i, m in enumerate(main):
            self(m)
            for x in extra.get(i, []):
                self(x)


def prefetch():
    return (f"buffer_load_dword v{C_PF}, v{C_PF+1}, {sr(SRD_T,4)}, s{S_PFO} offen\n"
            f"s_add_u32 s{S_PFO}, s{S_PFO}, s{S_PFS}\n"
            f"s_cmp_ge_u32 s{S_PFO}, s{S_PFL}\n"
            f"s_cmov_b32 s{SRD_T+2}, 0")


def path(p, ST, kind):
    nq = 1 if kind == "g" else 4
    mh = lambda s: [mf(AH(t, m), FH(s, t), X(s, m)) for t in range(3) for m in range(4)]
    def mq(s):
        if kind == "v":
            return [mf(AQ(t, m), X(s, m), FQ(s, t)) for t in range(4) for m in range(4)]
        return [mf(AQ(t, m), FQ(s, t), X(s, m)) for t in range(nq) for m in range(4)]
    rx = lambda s, ks: [f"ds_read_b128 {vr(X(s,m),4)}, v{C_XA+ks} offset:{m*2048}" for m in range(4)]
    rh = lambda s, ks: [f"ds_read_b64_tr_b16 {vr(FH(s,t)+2*h,2)}, v{C_HA+t} offset:{WH+ks*6144+h*768}"
                        for t in range(3) for h in range(2)]
    def rq(s, ks):
        if kind == "g":
            return [f"ds_read_b128 {vr(FQ(s,0),4)}, v{C_GA} offset:{ks*64}"]
        return [f"ds_read_b64_tr_b16 {vr(FQ(s,t)+2*h,2)}, v{C_QA+t} offset:{WQ+ks*8192+h*1024}"
                for t in range(4) for h in range(2)]
    def reads(s, ks):
        a, b = rh(s, ks), rx(s, ks)
        return a[:2] + b + a[2:] + rq(s, ks)
    nm = 12 + 4 * nq
    regs = [C_XA, C_XA + 1] + [C_HA + t for t in range(3)] + ([C_QA + t for t in range(4)] if nq == 4 else [])
    at = (lambda i: i) if nq == 4 else (lambda i: i * 2 // 3)

    poll(p, 0, 0)
    ST.t(3)
    L = Lds(p)
    for x in reads(0, 0): L(x)
    top = list(L.pend)
    p(f"s_mov_b32 s{S_CNT}, 9")
    p(f"s_mov_b32 s{S_SLOT}, 0")
    p(TR.t(1))
    p.label(f"L1_{kind}_loop")
    p(TR.t(0))
    ex = {}
    for i, r in enumerate(reads(1, 1)):
        ex.setdefault(at(i), []).append(r)
    n0 = max(ex) + 1
    ex.setdefault(n0, []).append(signal(72))
    ex.setdefault(n0, []).append(f"ds_read_b32 v{V_F}, v{V_CA} offset:4")
    ex.setdefault(n0, []).append(f"s_cmp_eq_u32 s{S_SLOT}, 2\n"
                                 f"s_mov_b32 s{S_T1}, {STAGE}\n"
                                 f"s_cmov_b32 s{S_T1}, {-2*STAGE}\n"
                                 f"s_add_u32 s{S_SLOT}, s{S_SLOT}, 1\n"
                                 f"s_cmp_eq_u32 s{S_SLOT}, 3\n"
                                 f"s_cmov_b32 s{S_SLOT}, 0")
    upd = [f"v_add_u32 v{r}, s{S_T1}, v{r}" for r in regs]
    if kind == "g":
        upd.append(f"v_add_u32 v{C_GA}, 128, v{C_GA}")
    upd.append(f"v_add_u32 v{V_CA}, 4, v{V_CA}")
    for i, u in enumerate(upd):
        ex.setdefault(n0 + 1 + i // 2, []).append(u)
    if PFG:
        ex.setdefault(nm - 2, []).append(prefetch())
    L.weave(mh(0) + mq(0), ex)
    m1 = mh(1) + mq(1)
    CK = 4
    for x in m1[:CK]: L(x)
    L(f"v_readfirstlane_b32 s{S_T0}, v{V_F}")
    p(TR.put(1))
    p(TR.put(0))
    L(m1[CK])
    p(f"s_cmp_lg_u32 s{S_T0}, 4")
    p(f"s_cbranch_scc1 L1_{kind}_late")
    p.label(f"L1_{kind}_go")
    p(TR.t(1))
    ex = {}
    for i, r in enumerate(reads(0, 0)):
        ex.setdefault(at(i), []).append(r)
    rest = m1[CK + 1:]
    ex.setdefault(len(rest) - 2, []).append(f"s_sub_u32 s{S_CNT}, s{S_CNT}, 1\ns_cmp_lg_u32 s{S_CNT}, 0")
    L.weave(rest, ex)
    assert L.pend == top
    p(f"s_cbranch_scc1 L1_{kind}_loop")
    ST.t(4)

    ws = sr(SRD_WS, 4)
    ex = {}
    for i, r in enumerate(reads(1, 1)):
        ex.setdefault(i // 2, []).append(r)
    L.weave(mh(0), ex)
    for x in mh(1): L(x)
    p("s_waitcnt lgkmcnt(0)")
    NL, ON, SCL = C_K, C_K + 2, C_K + 4
    SH = S_E
    SQ = S_E + 2
    MSK = S_E + 4

    def silu(mp, t, tmp, packed):
        a = AH(t, 2 * mp)
        o = []
        if packed:
            o += [f"v_pk_mul_f32 {vr(tmp+2*j,2)}, {vr(a+2*j,2)}, {vr(NL,2)}" for j in range(4)]
        else:
            o += [f"v_mul_f32 v{tmp+j}, v{a+j}, v{NL}" for j in range(8)]
        o += [f"v_exp_f32 v{tmp+j}, v{tmp+j}" for j in range(8)]
        if packed:
            o += [f"v_pk_add_f32 {vr(tmp+2*j,2)}, {vr(tmp+2*j,2)}, {vr(ON,2)}" for j in range(4)]
        else:
            o += [f"v_add_f32 v{tmp+j}, 1.0, v{tmp+j}" for j in range(8)]
        o += [f"v_rcp_f32 v{tmp+j}, v{tmp+j}" for j in range(8)]
        if packed:
            o += [f"v_pk_mul_f32 {vr(tmp+2*j,2)}, {vr(tmp+2*j,2)}, {vr(a+2*j,2)}" for j in range(4)]
        else:
            o += [f"v_mul_f32 v{tmp+j}, v{tmp+j}, v{a+j}" for j in range(8)]
        o += [f"v_cvt_pk_bf16_f32 v{a+j}, v{tmp+2*j}, v{tmp+2*j+1}" for j in range(4)]
        o += [f"v_permlane16_swap_b32 v{a}, v{a+2}", f"v_permlane16_swap_b32 v{a+1}, v{a+3}"]
        o += [f"buffer_store_dwordx4 {vr(a,4)}, v{C_OH}, {ws}, s{SH+mp} offen offset:{t*1024}{SC1}"]
        return o

    groups = [(mp, t) for mp in range(2) for t in range(3)]
    tmps = [FH(0, 0), FH(1, 0)]
    first = silu(0, 0, tmps[0], False)
    qm = mq(0) + mq(1)
    k = 0
    for m in qm:
        p(m)
        room = 8
        while k < len(first) and room > 0:
            room -= 8 if first[k].startswith(("v_exp", "v_rcp")) else 4
            p(first[k]); k += 1
    for x in first[k:]: p(x)
    ST.t(5)
    for x in silu(0, 1, tmps[1], True): p(x)

    if kind == "g":
        t = V_T
        p(f"v_lshrrev_b32 v{t}, 4, v{V_LANE}")
        p(f"v_mov_b32 v{t+1}, v{AQ(0,0)}")
        for m in range(1, 4):
            p(f"v_cmp_eq_u32 vcc, {m}, v{t}")
            p(f"v_cndmask_b32 v{t+1}, v{t+1}, v{AQ(0,m)}, vcc")
        p(f"v_mul_f32 v{t+1}, v{t+1}, v{NL}")
        p(f"v_exp_f32 v{t+1}, v{t+1}")
        p(f"v_add_f32 v{t+1}, 1.0, v{t+1}")
        p(f"v_rcp_f32 v{t+1}, v{t+1}")
        p(f"buffer_store_dword v{t+1}, v{C_OQ}, {ws}, s{SQ} offen")
    else:
        for t in range(4):
            for mp in range(2):
                a = AQ(t, 2 * mp)
                if kind == "qk":
                    for j in range(4):
                        p(f"v_pk_mul_f32 {vr(a+2*j,2)}, {vr(a+2*j,2)}, {vr(SCL,2)}")
                for j in range(4):
                    p(f"v_cvt_pk_bf16_f32 v{a+j}, v{a+2*j}, v{a+2*j+1}")
            if kind == "qk":
                p(f"s_mov_b64 exec, {sr(MSK+2*t,2)}")
                for mp in range(2):
                    a = AQ(t, 2 * mp)
                    p(f"v_permlane16_swap_b32 v{a}, v{a+2}")
                    p(f"v_permlane16_swap_b32 v{a+1}, v{a+3}")
                p("s_mov_b64 exec, -1")
            for mp in range(2):
                p(f"buffer_store_dwordx4 {vr(AQ(t,2*mp),4)}, v{C_OQ+t}, {ws}, s{SQ+mp} offen{SC1}")
    ST.t(6)
    for i, (mp, t) in enumerate(groups[2:]):
        for x in silu(mp, t, tmps[i & 1], True): p(x)
    TR.flush(SRD_WS, S_WAVE)
    ST.flush(9, SRD_WS, S_WAVE, 2)
    p("s_endpgm")
    p.label(f"L1_{kind}_late")
    poll(p, 0, 0)
    p(f"s_branch L1_{kind}_go")


def compute(p, ST):
    t = V_T
    WM, WN, SL = S_WR, S_WRH, S_SX
    p(f"s_and_b32 s{WM}, s{S_WAVE}, 1")
    p(f"s_bfe_u32 s{WN}, s{S_WAVE}, 0x10001")
    p(f"v_mov_b32 v{V_CA}, {CNT}")
    p(f"v_mov_b32 v{V_ONE}, 1")
    if PFG:
        J, Q4, LD, ST1 = S_T0, S_T1, S_T2, S_T3
        p(f"s_lshr_b32 s{J}, s2, 3")
        p(f"s_bfe_u32 s{Q4}, s2, 0x20001")
        p(f"v_bfe_u32 v{t}, v{V_LANE}, 4, 2")
        p(f"v_and_b32 v{t}, {PFG-1}, v{t}")
        p(f"s_cmp_eq_u32 s{WN}, 0")
        p("s_cbranch_scc1 L1_pfx")
        p(f"s_cmp_eq_u32 s{WM}, 0")
        ssel(p, LD, 3840, 3072)
        ssel(p, S_PFL, 1024, 768)
        p(f"s_mul_i32 s{Q4}, s{Q4}, s{S_PFL}")
        p(f"s_sub_u32 s{S_PFL}, s{S_PFL}, 128")
        p(f"s_cmp_eq_u32 s{Q4}, 3072")
        p(f"s_cmov_b32 s{S_PFL}, 640")
        p(f"v_and_b32 v{t+1}, 7, v{V_LANE}")
        p(f"v_lshlrev_b32 v{t+1}, 7, v{t+1}")
        p(f"v_min_u32 v{t+1}, s{S_PFL}, v{t+1}")
        p(f"v_bfe_u32 v{t+2}, v{V_LANE}, 3, 1")
        p(f"v_lshl_add_u32 v{t+2}, v{t}, 6, v{t+2}")
        p(f"v_mad_u32_u24 v{C_PF+1}, v{t+2}, s{LD}, v{t+1}")
        p(f"s_lshl_b32 s{J}, s{J}, 1")
        p(f"s_add_u32 s{J}, s{J}, {64*PF0}")
        p(f"s_mul_i32 s{S_PFO}, s{J}, s{LD}")
        p(f"s_add_u32 s{S_PFO}, s{S_PFO}, s{Q4}")
        p(f"s_mul_i32 s{S_PFS}, s{LD}, {64*PFG}")
        p(f"s_mul_i32 s{S_PFL}, s{LD}, 640")
        p(f"s_mov_b32 s{SRD_T+2}, s{S_PFL}")
        p(f"s_mov_b32 s{SRD_T+3}, 0x00020000")
        p(f"s_cmp_eq_u32 s{WM}, 0")
        p("s_waitcnt lgkmcnt(0)")
        p(f"s_cselect_b32 s{SRD_T}, s6, s12")
        p(f"s_cselect_b32 s{SRD_T+1}, s7, s13")
        p("s_branch L1_pfgo")
        p.label("L1_pfx")
        p(f"v_and_b32 v{t+1}, 15, v{V_LANE}")
        p(f"v_mul_u32_u24 v{t+1}, 1280, v{t+1}")
        p(f"v_lshl_add_u32 v{C_PF+1}, v{t}, 7, v{t+1}")
        p(f"s_lshl_b32 s{J}, s{J}, 1")
        p(f"s_add_u32 s{J}, s{J}, s{WM}")
        p(f"s_and_b32 s{Q4}, s2, 1")
        p(f"s_lshl_b32 s{Q4}, s{Q4}, 6")
        p(f"s_add_u32 s{J}, s{J}, s{Q4}")
        p(f"s_mul_i32 s{J}, s{J}, {16*1280}")
        p(f"s_add_u32 s{S_PFO}, s{J}, {128*PF0}")
        p(f"s_add_u32 s{S_PFL}, s{J}, 1280")
        p(f"s_mov_b32 s{S_PFS}, {128*PFG}")
        p("s_waitcnt lgkmcnt(0)")
        srd(p, SRD_T, 4, 2048 * 1280)
        p.label("L1_pfgo")
        for i in range(PFN):
            if PFD: p(f"s_sleep {PFD}")
            p(prefetch())
    p("s_waitcnt lgkmcnt(0)")
    srd(p, SRD_WS, 20, WS_BYTES)
    r, kg, r4, c4 = t, t + 1, t + 2, t + 3
    p(f"v_and_b32 v{r}, 15, v{V_LANE}")
    p(f"v_lshrrev_b32 v{kg}, 4, v{V_LANE}")
    p(f"v_bfe_u32 v{r4}, v{V_LANE}, 2, 2")
    p(f"v_and_b32 v{c4}, 3, v{V_LANE}")
    p(f"v_lshrrev_b32 v{t+4}, 1, v{r}")
    p(f"v_xor_b32 v{t+4}, v{t+4}, v{kg}")
    p(f"v_lshlrev_b32 v{t+4}, 4, v{t+4}")
    p(f"v_lshl_add_u32 v{t+4}, v{r}, 7, v{t+4}")
    p(f"s_lshl_b32 s{S_T0}, s{WM}, 13")
    p(f"v_add_u32 v{C_XA}, s{S_T0}, v{t+4}")
    p(f"v_xor_b32 v{C_XA+1}, 64, v{C_XA}")
    p(f"v_lshl_add_u32 v{t+4}, v{kg}, 3, v{r4}")
    p(f"v_and_b32 v{t+5}, 1, v{kg}")
    p(f"v_lshl_or_b32 v{t+6}, v{t+5}, 2, v{r4}")
    p(f"s_lshl_b32 s{S_T0}, s{WN}, 2")
    for q in range(4):
        p(f"s_add_u32 s{S_T1}, s{S_T0}, {q}")
        p(f"v_xor_b32 v{C_QA+q}, s{S_T1}, v{t+6}")
        p(f"v_lshlrev_b32 v{C_QA+q}, 5, v{C_QA+q}")
        p(f"v_lshl_add_u32 v{C_QA+q}, v{t+4}, 8, v{C_QA+q}")
        p(f"v_lshl_add_u32 v{C_QA+q}, v{c4}, 3, v{C_QA+q}")
    p(f"v_mul_u32_u24 v{t+4}, 192, v{t+4}")
    p(f"v_lshl_add_u32 v{t+4}, v{c4}, 3, v{t+4}")
    p(f"s_mul_i32 s{S_T0}, s{WN}, 3")
    for q in range(3):
        p(f"s_add_u32 s{S_T1}, s{S_T0}, {q}")
        p(f"v_xor_b32 v{C_HA+q}, s{S_T1}, v{t+5}")
        p(f"v_lshl_add_u32 v{C_HA+q}, v{C_HA+q}, 5, v{t+4}")
    p(f"v_lshlrev_b32 v{C_GA}, 4, v{kg}")
    p(f"v_add_u32 v{C_GA}, {GW}, v{C_GA}")
    if ROT != (0, 0):
        p(f"s_lshl_b32 s{S_T0}, s{S_ST}, 7")
        p(f"v_add_u32 v{C_GA}, s{S_T0}, v{C_GA}")
    for i in range(112):
        p(f"v_mov_b32 v{ACC+i}, 0")
    NL, ON, SCL = C_K, C_K + 2, C_K + 4
    for j in range(2):
        p(f"v_mov_b32 v{NL+j}, {f32bits(-1.4426950408889634):#x}")
        p(f"v_mov_b32 v{ON+j}, 1.0")
    SH, SQ, MSK = S_E, S_E + 2, S_E + 4
    MT = S_SQ
    tok = t + 2
    p(f"v_lshrrev_b32 v{t+4}, 3, v{r}")
    p(f"v_lshlrev_b32 v{t+4}, 4, v{t+4}")
    p(f"v_and_b32 v{t+5}, 7, v{r}")
    p(f"v_add_u32 v{t+4}, v{t+4}, v{t+5}")
    p(f"v_and_b32 v{t+5}, 1, v{kg}")
    p(f"v_lshl_add_u32 v{tok}, v{t+5}, 3, v{t+4}")
    p(f"v_lshrrev_b32 v{c4}, 1, v{kg}")
    p(f"v_lshlrev_b32 v{C_OH}, 4, v{tok}")
    p(f"v_lshl_add_u32 v{C_OH}, v{c4}, 9, v{C_OH}")
    p(f"s_lshl_b32 s{MT}, s{S_RB}, 2")
    p(f"s_lshl_b32 s{S_T0}, s{WM}, 1")
    p(f"s_add_u32 s{MT}, s{MT}, s{S_T0}")
    p(f"s_lshl_b32 s{SL}, s{S_CG}, 1")
    p(f"s_add_u32 s{SL}, s{SL}, s{WN}")
    p(f"s_mul_i32 s{S_T0}, s{MT}, 96")
    p(f"s_mul_i32 s{S_T1}, s{SL}, 3")
    p(f"s_add_u32 s{S_T0}, s{S_T0}, s{S_T1}")
    p(f"s_lshl_b32 s{S_T0}, s{S_T0}, 10")
    p(f"s_add_u32 s{SH}, s{S_T0}, {HOFF}")
    p(f"s_add_u32 s{SH+1}, s{S_T0}, {HOFF+96*1024}")
    ST.t(2)
    p(f"s_cmp_ge_u32 s{S_CG}, 10")
    p("s_cbranch_scc1 L1_vg")

    HS, TS = S_T2, S_T3
    qs = f32bits(20 ** -0.5 * 1.4426950408889634)
    p(f"s_cmp_lt_u32 s{S_CG}, 5")
    p(f"s_cselect_b32 s{S_T0}, {qs:#x}, 1.0")
    ssel(p, HS, 64 * 1280, KVH)
    ssel(p, TS, 1280, KVT)
    ssel(p, SQ, QOFF, KVOFF)
    p(f"s_cselect_b32 s{S_T1}, 0, 10")
    p(f"v_mov_b32 v{SCL}, s{S_T0}")
    p(f"v_mov_b32 v{SCL+1}, s{S_T0}")
    p(f"s_sub_u32 s{SL}, s{SL}, s{S_T1}")
    p(f"s_lshl_b32 s{SL}, s{SL}, 3")
    p(f"s_mul_i32 s{S_T0}, s{MT}, s{TS}")
    p(f"s_add_u32 s{SQ}, s{SQ}, s{S_T0}")
    p(f"s_add_u32 s{SQ+1}, s{SQ}, s{TS}")
    a, b, c, d = SET[0] + 4, SET[0] + 5, SET[0] + 6, SET[0] + 7
    p(f"v_lshlrev_b32 v{tok}, 4, v{tok}")
    p(f"v_lshlrev_b32 v{r}, 4, v{r}")
    p(f"v_add_u32 v{r}, 1024, v{r}")
    for q in range(4):
        p(f"s_add_u32 s{S_T0}, s{SL}, {2*q}")
        p(f"v_add_u32 v{a}, s{S_T0}, v{c4}")
        p(f"v_mul_u32_u24 v{b}, 205, v{a}")
        p(f"v_lshrrev_b32 v{b}, 10, v{b}")
        p(f"v_mul_u32_u24 v{c}, 5, v{b}")
        p(f"v_sub_u32 v{a}, v{a}, v{c}")
        p(f"v_cmp_ne_u32 {sr(MSK+2*q,2)}, 2, v{a}")
        p(f"v_cmp_lt_u32 vcc, 2, v{a}")
        p(f"v_cndmask_b32 v{c}, 0, 1, vcc")
        p(f"v_mul_u32_u24 v{d}, 3, v{c}")
        p(f"v_sub_u32 v{a}, v{a}, v{d}")
        p(f"v_lshl_add_u32 v{a}, v{a}, 9, v{tok}")
        p(f"v_cndmask_b32 v{c}, v{t+5}, v{c}, {sr(MSK+2*q,2)}")
        p(f"v_cndmask_b32 v{a}, v{r}, v{a}, {sr(MSK+2*q,2)}")
        p(f"v_lshl_add_u32 v{b}, v{b}, 1, v{c}")
        p(f"v_mad_u32_u24 v{C_OQ+q}, v{b}, s{HS}, v{a}")
    path(p, ST, "qk")

    p.label("L1_vg")
    p(f"s_cmp_eq_u32 s{S_CG}, 15")
    p("s_cbranch_scc1 L1_g")
    p(f"s_mul_i32 s{S_T0}, s{MT}, {KVT}")
    p(f"s_add_u32 s{SQ}, s{S_T0}, {KVOFF+1280}")
    p(f"s_add_u32 s{SQ+1}, s{S_T0}, {KVOFF+1280+KVT}")
    p(f"s_sub_u32 s{SL}, s{SL}, 20")
    p(f"s_lshl_b32 s{SL}, s{SL}, 6")
    p(f"s_mov_b32 s{S_T2}, {KVH}")
    p(f"v_mul_u32_u24 v{d}, 320, v{kg}")
    for q in range(4):
        p(f"s_add_u32 s{S_T0}, s{SL}, {16*q}")
        p(f"v_add_u32 v{a}, s{S_T0}, v{r}")
        p(f"v_mul_u32_u24 v{b}, 3277, v{a}")
        p(f"v_lshrrev_b32 v{b}, 16, v{b}")
        p(f"v_mul_u32_u24 v{c}, 20, v{b}")
        p(f"v_sub_u32 v{a}, v{a}, v{c}")
        p(f"v_lshl_add_u32 v{a}, v{a}, 4, v{d}")
        p(f"v_mad_u32_u24 v{C_OQ+q}, v{b}, s{S_T2}, v{a}")
    path(p, ST, "v")

    p.label("L1_g")
    p(f"v_lshl_add_u32 v{tok}, v{c4}, 5, v{tok}")
    p(f"v_lshlrev_b32 v{C_OQ}, 2, v{tok}")
    p(f"s_lshl_b32 s{S_T0}, s{MT}, 7")
    p(f"s_add_u32 s{SQ}, s{S_T0}, {GOFF}")
    one = AQ(1, 0)
    for j in range(4):
        p(f"v_mov_b32 v{one+j}, 0x3f803f80")
    p(f"v_and_b32 v{a}, 31, v{V_LANE}")
    p(f"v_mul_u32_u24 v{a}, {KVH}, v{a}")
    p(f"v_mul_u32_u24 v{b}, {KVT}, v{c4}")
    p(f"v_add_u32 v{a}, v{a}, v{b}")
    p(f"s_mul_i32 s{S_T0}, s{MT}, {KVT}")
    p(f"s_add_u32 s{S_T0}, s{S_T0}, {KVOFF}")
    p(f"buffer_store_dwordx4 {vr(one,4)}, v{a}, {sr(SRD_WS,4)}, s{S_T0} offen offset:2560{SC1}")
    path(p, ST, "g")


def decode(p):
    p(f"s_and_b32 s{S_RB}, s2, 1")
    p(f"s_lshl_b32 s{S_RB}, s{S_RB}, 3")
    p(f"s_bfe_u32 s{S_T0}, s2, 0x30003")
    p(f"s_add_u32 s{S_RB}, s{S_RB}, s{S_T0}")
    p(f"s_bfe_u32 s{S_CG}, s2, 0x20001")
    p(f"s_lshl_b32 s{S_CG}, s{S_CG}, 2")
    p(f"s_lshr_b32 s{S_T1}, s2, 6")
    p(f"s_add_u32 s{S_CG}, s{S_CG}, s{S_T1}")
    if ROT != (0, 0):
        p(f"s_mul_i32 s{S_T0}, s{S_T0}, {ROT[1]}")
        p(f"s_mul_i32 s{S_T1}, s{S_T1}, {ROT[0]}")
        p(f"s_add_u32 s{S_T0}, s{S_T0}, s{S_T1}")
        p(f"s_lshr_b32 s{S_T0}, s{S_T0}, 1")
        p(f"s_mul_i32 s{S_T1}, s{S_T0}, 205")
        p(f"s_lshr_b32 s{S_T1}, s{S_T1}, 11")
        p(f"s_mul_i32 s{S_T1}, s{S_T1}, 10")
        p(f"s_sub_u32 s{S_ST}, s{S_T0}, s{S_T1}")


def build():
    p = Prog()
    p.label(LABEL)
    p("s_cmp_ge_u32 s2, 256")
    p("s_cbranch_scc1 L1_end")
    ST = Stamps(p, 0)
    ST.t(0, True); ST.t(1)
    global TR
    TR = Trace(p, 0, 236, V_LANE)
    TR.init()
    t = V_T
    p(f"v_and_b32 v{V_LANE}, 63, v0")
    p(f"v_lshrrev_b32 v{t}, 6, v0")
    p(f"v_readfirstlane_b32 s{S_WAVE}, v{t}")
    p(f"s_cmp_lt_u32 s{S_WAVE}, 4")
    p("s_cbranch_scc1 L1_args")
    p(f"v_lshlrev_b32 v{t}, 2, v{V_LANE}")
    p(f"v_add_u32 v{t}, {CNT}, v{t}")
    p(f"v_cmp_eq_u32 vcc, 17, v{V_LANE}")
    p(f"v_cndmask_b32 v{t+1}, 0, 4, vcc")
    p(f"ds_write_b32 v{t}, v{t+1}")
    p("s_waitcnt lgkmcnt(0)")
    p.label("L1_args")
    p("s_load_dwordx16 s[4:19], s[0:1], 0")
    p("s_load_dwordx2 s[20:21], s[0:1], 72")
    decode(p)
    p("s_barrier")
    p(f"s_cmp_ge_u32 s{S_WAVE}, 4")
    p("s_cbranch_scc1 L1_compute")
    loader(p, ST)
    p.label("L1_compute")
    compute(p, ST)
    p.label("L1_end")
    p("s_endpgm")
    return header(LABEL) + p.finish(name="k1"), descriptor(LABEL, NV)
```
